```python
import torch

def _softmax(x, axis=-1):
    return torch.softmax(x, dim=axis)
def _gelu(x):
    return torch.nn.functional.gelu(x, approximate="tanh")
def _silu(x):
    return torch.nn.functional.silu(x)
def _sigmoid(x):
    return torch.sigmoid(x)
def _layernorm(x, axis=-1, eps=1e-5):
    m = x.mean(dim=axis, keepdim=True)
    v = x.var(dim=axis, keepdim=True, unbiased=False)
    return (x - m) / torch.sqrt(v + eps)
def _scatter_add(tgt, idx, src, axis=0):
    return tgt.clone().index_add_(axis, idx, src)
def _segment_sum(src, seg, n):
    out = torch.zeros((n,) + src.shape[1:], dtype=src.dtype)
    return out.index_add_(0, seg, src)
def _pad(x, pw):
    flat = tuple(v for pair in reversed(pw) for v in pair)
    return torch.nn.functional.pad(x, flat)

kernel_name = 'recurrent_scan__mha_block__swiglu_ffn__prompt'

def setup_inputs():

    _w = (lambda a: (lambda t: t.to(torch.bfloat16) if t.is_floating_point() else t)(torch.as_tensor(a)))
    def _A_setup():
        B, S, D, H = 1, 2048, 512, 32
        return {
            "x": _w((lambda *s: torch.randn(*s, dtype=torch.bfloat16) * 0.05)(B, S, D)),
            "wqkv": _w((lambda *s: torch.randn(*s, dtype=torch.bfloat16) * 0.05)(D, 3 * D)),
            "wo": _w((lambda *s: torch.randn(*s, dtype=torch.bfloat16) * 0.05)(D, D)),
        }
    _A_in = _A_setup()

    def _B_setup():
        B, S, D, F = 1, 2048, 512, 1376
        return {
            "x": _w((lambda *s: torch.randn(*s, dtype=torch.bfloat16) * 0.05)(B, S, D)),
            "w_gate": _w((lambda *s: torch.randn(*s, dtype=torch.bfloat16) * 0.05)(D, F)),
            "w_up": _w((lambda *s: torch.randn(*s, dtype=torch.bfloat16) * 0.05)(D, F)),
            "w_down": _w((lambda *s: torch.randn(*s, dtype=torch.bfloat16) * 0.05)(F, D)),
        }
    _B_in = _B_setup()

    return {
        "A_x": _A_in["x"],
        "A_wqkv": _A_in["wqkv"],
        "A_wo": _A_in["wo"],
        "B_x": _B_in["x"],
        "B_w_gate": _B_in["w_gate"],
        "B_w_up": _B_in["w_up"],
        "B_w_down": _B_in["w_down"],
    }

def reference(A_x, A_wqkv, A_wo, B_x, B_w_gate, B_w_up, B_w_down):
    def _A_ref(x, wqkv, wo):
        B, S, D = x.shape
        H = 32
        Dh = D // H
        qkv = (lambda x, *d: x.permute(*d))((x @ wqkv).reshape(B, S, 3, H, Dh), 2, 0, 3, 1, 4)
        q, k, v = qkv[0], qkv[1], qkv[2]
        scores = torch.einsum("bhqd,bhkd->bhqk", q, k) * (Dh ** -0.5)
        p = _softmax(scores, axis=-1)
        o = torch.einsum("bhqk,bhkd->bhqd", p, v)
        return (lambda x, *d: x.permute(*d))(o, 0, 2, 1, 3).reshape(B, S, D) @ wo

    def _B_ref(x, w_gate, w_up, w_down):
        g = _silu(x @ w_gate)
        u = x @ w_up
        return (g * u) @ w_down

    x = A_x
    xn = _layernorm(x, axis=-1)
    s = _A_ref(xn, A_wqkv, A_wo)
    g = _silu(_B_ref(xn, B_w_gate, B_w_up, B_w_down))
    return x + s * g
```

```python
class Asm:
    def __init__(self):
        self.L = []
        self.uid = 0
    def __call__(self, s=""):
        for line in s.split("\n"):
            line = line.strip()
            if not line:
                continue
            if line.endswith(":") or line.startswith("."):
                self.L.append(line)
            else:
                self.L.append("    " + line)
    def c(self, s):
        self.L.append("    ; " + s)
    def label(self, base):
        self.uid += 1
        return f"L_{base}_{self.uid}"
    def text(self):
        return "\n".join(self.L) + "\n"

def v(a, n=1):
    return f"v{a}" if n == 1 else f"v[{a}:{a+n-1}]"
def s(a, n=1):
    return f"s{a}" if n == 1 else f"s[{a}:{a+n-1}]"

def srd(A, d, base, nbytes):
    A(f"s_mov_b32 s{d}, s{base}")
    A(f"s_and_b32 s{d+1}, s{base+1}, 0xffff")
    A(f"s_mov_b32 s{d+2}, {nbytes:#x}")
    A(f"s_mov_b32 s{d+3}, 0x00020000")

def kdesc(name, vgpr=256, sgpr=102):
    return f""".amdhsa_kernel {name}
  .amdhsa_next_free_vgpr {vgpr}
  .amdhsa_next_free_sgpr {sgpr}
  .amdhsa_accum_offset {vgpr}
  .amdhsa_group_segment_fixed_size 0
  .amdhsa_kernarg_size 80
  .amdhsa_user_sgpr_count 2
  .amdhsa_user_sgpr_kernarg_segment_ptr 1
  .amdhsa_system_sgpr_workgroup_id_x 1
.end_amdhsa_kernel
"""
```

```python
import struct, math
from asmlib import *

QF, KF, VF, OF, HF, FL = 0x000000, 0x200000, 0x400000, 0x600000, 0x800000, 0xE00000
WS_BYTES = 0x1000000
def f2u(x): return struct.unpack("<I", struct.pack("<f", x))[0]
LOG2E = 1.4426950408889634

sX, sWQ, sWG, sWS, sWD, sWO, sOUT = 8, 12, 16, 20, 24, 28, 32
S_W, S_RT, S_CH, S_ONES = 36, 37, 38, 39
PTR = 64

class Cnt:
    def __init__(self, mx): self.q, self.mx = [], mx
    def add(self, tag): self.q.append(tag)
    def need(self, tags):
        if not isinstance(tags, list): tags = [tags]
        last = -1
        for i, t in enumerate(self.q):
            if t in tags: last = i
        return min(len(self.q) - 1 - last, self.mx)
    def copy(self):
        c = Cnt(self.mx); c.q = list(self.q); return c

class Ctx:
    def __init__(self, A):
        self.A = A; self.vm = [Cnt(63)]; self.lg = Cnt(15)
    def vadd(self, tag):
        for c in self.vm: c.add(tag)
    def vwait(self, tags):
        n = min(c.need(tags) for c in self.vm)
        self.A(f"s_waitcnt vmcnt({n})")
    def lwait(self, tags):
        self.A(f"s_waitcnt lgkmcnt({self.lg.need(tags)})")
    def lwait0(self):
        self.A("s_waitcnt lgkmcnt(0)"); self.lg.q = []

def prologue(A, name):
    A(f".globl {name}\n.p2align 8\n.type {name},@function\n{name}:")
    A(f"s_cmp_ge_u32 s2, 256\ns_cbranch_scc1 L_end_{name}")
    A(f"s_load_dwordx16 s[{PTR}:{PTR+15}], s[0:1], 0")
    A(f"s_load_dwordx4 s[{PTR+16}:{PTR+19}], s[0:1], 64")
    A("v_lshrrev_b32 v1, 6, v0")
    A("s_and_b32 s40, s2, 7\ns_lshr_b32 s41, s2, 3")
    A(f"v_readfirstlane_b32 s{S_W}, v1")
    A("v_and_b32 v1, 63, v0")
    A(f"s_mov_b32 s{S_ONES}, 0x3f803f80")
    A("s_waitcnt lgkmcnt(0)")
    srd(A, sWS, PTR + 18, WS_BYTES)

def epilogue(A, name):
    A(f"L_end_{name}:\ns_endpgm")

SLOT = 28672
MISC = 5 * SLOT
CSX = MISC
STA = MISC + 6144
XR = 128
BUF = lambda p: 32 + 12 * p
ACC = lambda j: 56 + 16 * j
S_RB, S_CB = 42, 43
S_K2048, S_K1024, S_K3072 = 44, 84, 88
S_W2048, S_W1024, S_W512, S_BM = 92, 93, 94, 95

def ab_setup(A):
    srd(A, sX, PTR + 0, 2048 * 512 * 2)
    srd(A, sWQ, PTR + 2, 512 * 1536 * 2)
    A(f"s_and_b32 s{S_RT}, s{S_W}, 3\ns_lshr_b32 s{S_CH}, s{S_W}, 2")
    A(f"s_cmp_eq_u32 s{S_CH}, 0")
    A(f"s_cselect_b32 s{sWG}, s{PTR+8}, s{PTR+10}\ns_cselect_b32 s{sWG+1}, s{PTR+9}, s{PTR+11}")
    A(f"s_and_b32 s{sWG+1}, s{sWG+1}, 0xffff\ns_mov_b32 s{sWG+2}, {512*1376*2:#x}\ns_mov_b32 s{sWG+3}, 0x00020000")
    A(f"s_and_b32 s48, s40, 1\ns_lshl_b32 s48, s48, 3\ns_and_b32 s49, s41, 7\ns_add_u32 s{S_RB}, s48, s49")
    A(f"s_lshr_b32 s48, s40, 1\ns_lshl_b32 s48, s48, 2\ns_lshr_b32 s49, s41, 3\ns_add_u32 s{S_CB}, s48, s49")
    A(f"s_lshl_b32 s{S_W2048}, s{S_W}, 11\ns_lshl_b32 s{S_W1024}, s{S_W}, 10\ns_lshl_b32 s{S_W512}, s{S_W}, 9")
    A.c("x DMA offsets v2, v3")
    A(f"""v_lshrrev_b32 v26, 3, v1
    v_lshrrev_b32 v27, 4, v1
    v_and_b32 v28, 7, v1
    v_xor_b32 v29, v28, v27
    v_lshlrev_b32 v29, 4, v29
    s_lshl_b32 s48, s{S_RB}, 7
    s_lshl_b32 s49, s{S_W}, 4
    s_add_u32 s48, s48, s49
    v_add_u32 v2, s48, v26
    v_lshl_add_u32 v2, v2, 10, v29
    v_xor_b32 v3, 64, v2
    v_add_u32 v3, 0x2000, v3""")
    A.c("wqkv DMA offsets v4 (128-B part), v5 (64-B part)")
    A(f"""s_lshr_b32 s50, s{S_CB}, 1
    s_and_b32 s51, s{S_CB}, 1
    s_lshl_b32 s48, s51, 10
    s_lshl_b32 s49, s50, 7
    s_add_u32 s52, s48, s49
    s_lshl_b32 s48, s51, 6
    s_add_u32 s53, s48, s49
    s_add_u32 s53, s53, 2048
    s_lshl_b32 s54, s{S_W}, 3
    s_movk_i32 s55, 3072
    v_and_b32 v27, 1, v27
    v_lshlrev_b32 v27, 2, v27
    v_xor_b32 v27, v27, v28
    v_lshlrev_b32 v27, 4, v27
    v_add_u32 v4, s54, v26
    v_mul_u32_u24 v4, s55, v4
    v_add3_u32 v4, v4, v27, s52
    v_bfe_u32 v5, v1, 2, 3
    v_add_u32 v5, s54, v5
    v_mul_u32_u24 v5, s55, v5
    v_and_b32 v27, 3, v1
    v_lshlrev_b32 v27, 4, v27
    v_add3_u32 v5, v5, v27, s53""")

def ab_setup2(A):
    A.c("gate/up DMA offsets v6..v8")
    A(f"""s_mul_i32 s48, s{S_CB}, 192
    s_mul_i32 s49, s{S_RT}, {16*2752}
    s_add_u32 s48, s48, s49
    s_movk_i32 s55, 2752""")
    for m in range(3):
        A(f"""v_add_u32 v26, {64*m}, v1
        v_mul_u32_u24 v27, 171, v26
        v_lshrrev_b32 v27, 11, v27
        v_mul_u32_u24 v28, 12, v27
        v_sub_u32 v26, v26, v28
        v_lshlrev_b32 v26, 4, v26
        v_mul_u32_u24 v27, s55, v27
        v_add3_u32 v{6+m}, v26, v27, s48""")
    A(f"""s_mul_i32 s{S_BM}, s{S_CH}, 12320
    s_mul_i32 s48, s{S_RT}, 3072
    s_add_u32 s{S_BM}, s{S_BM}, s48""")
    for j in range(4):
        A(f"""s_xor_b32 s48, s{S_RT}, {j}
        s_lshl_b32 s{S_K2048+j}, s48, 11
        s_lshl_b32 s{S_K1024+j}, s48, 10
        s_mul_i32 s{S_K3072+j}, s48, 3072""")
    A.c("LDS read addresses: v9..v12 x, v13/v14 wqkv, v15 gate/up")
    A(f"""v_and_b32 v26, 31, v1
    v_lshrrev_b32 v27, 5, v1
    v_bfe_u32 v28, v1, 1, 3
    v_xor_b32 v28, v28, v27
    s_lshl_b32 s48, s{S_RT}, 1
    v_xor_b32 v28, s48, v28
    v_lshlrev_b32 v28, 4, v28
    s_lshl_b32 s48, s{S_RT}, 12
    v_lshlrev_b32 v26, 7, v26
    v_add3_u32 v9, v26, v28, s48
    v_xor_b32 v10, 32, v9
    v_xor_b32 v11, 64, v9
    v_xor_b32 v12, 0x60, v9
    v_bfe_u32 v26, v1, 2, 2
    v_lshl_add_u32 v26, v27, 3, v26
    v_bfe_u32 v28, v1, 4, 1
    v_and_b32 v29, 3, v1
    v_lshlrev_b32 v29, 3, v29
    v_lshl_add_u32 v30, v28, 5, v29
    v_bfe_u32 v31, v1, 3, 1
    v_lshlrev_b32 v31, 6, v31
    v_lshlrev_b32 v13, 7, v26
    v_add3_u32 v13, v13, v30, v31
    v_add_u32 v13, 0x4000, v13
    v_xor_b32 v14, 64, v13
    v_lshl_add_u32 v31, v26, 6, v30
    v_add_u32 v31, 0x6000, v31
    s_movk_i32 s48, 192
    v_mul_u32_u24 v15, s48, v26
    s_movk_i32 s48, 12320
    v_mul_u32_u24 v28, s48, v28
    v_add3_u32 v15, v15, v28, v29
    s_mul_i32 s48, s{S_CH}, 96
    v_add_u32 v15, s48, v15
    s_cmp_eq_u32 s{S_CH}, 0
    s_cselect_b64 vcc, -1, 0
    v_cndmask_b32 v13, v31, v13, vcc
    v_mov_b32 v19, 0
    v_mov_b32 v20, 0
    v_mov_b32 v21, 0
    v_mov_b32 v22, 0
    v_mov_b32 v23, 0""")

def dma_ab(C, c):
    A = C.A
    slot = (c % 5) * SLOT
    if c < 8:
        A(f"s_add_u32 m0, s{S_W2048}, {slot}\ns_movk_i32 s48, {128*c}")
        A(f"buffer_load_dwordx4 v2, s[{sX}:{sX+3}], s48 offen lds"); C.vadd(("c", c))
        A(f"s_add_u32 m0, s{S_W2048}, {slot+1024}\ns_mov_b32 s49, {196608*c}")
        A(f"buffer_load_dwordx4 v3, s[{sX}:{sX+3}], s48 offen lds"); C.vadd(("c", c))
        A(f"s_add_u32 m0, s{S_W1024}, {slot+16384}\ns_nop 0")
        A(f"buffer_load_dwordx4 v4, s[{sWQ}:{sWQ+3}], s49 offen lds"); C.vadd(("c", c))
        A(f"s_add_u32 m0, s{S_W512}, {slot+24576}\ns_mov_b32 exec_hi, 0")
        A(f"buffer_load_dwordx4 v5, s[{sWQ}:{sWQ+3}], s49 offen lds"); C.vadd(("c", c))
        A("s_mov_b32 exec_hi, -1")
    else:
        A(f"s_mov_b32 s49, {176128*(c-8)}")
        for m in range(3):
            A(f"s_add_u32 m0, s{S_BM}, {slot+1024*m}\ns_nop 0")
            A(f"buffer_load_dwordx4 v{6+m}, s[{sWG}:{sWG+3}], s49 offen lds"); C.vadd(("c", c))

def rd_a(C, c, j, ch):
    A = C.A; slot = (c % 5) * SLOT; b = BUF(j % 2); tag = ("r", c, j)
    x = XR + 4 * (4 * c + j)
    if slot < 65536:
        A(f"ds_read_b128 {v(x,4)}, v{9+j} offset:{slot}")
    else:
        A(f"v_add_u32 v18, {slot}, v{9+j}\nds_read_b128 {v(x,4)}, v18")
    C.lg.add(tag)
    if ch == 0:
        A(f"s_add_u32 s48, s{S_K2048+j}, {slot}\nv_add_u32 v16, s48, v13\nv_add_u32 v17, s48, v14")
        for t in range(2):
            for u in range(2):
                A(f"ds_read_b64_tr_b16 {v(b+4*t+2*u,2)}, v{16+t} offset:{512*u}"); C.lg.add(tag)
    else:
        A(f"s_add_u32 s48, s{S_K1024+j}, {slot}\nv_add_u32 v16, s48, v13")
        for u in range(2):
            A(f"ds_read_b64_tr_b16 {v(b+2*u,2)}, v16 offset:{256*u}"); C.lg.add(tag)

def mm_a(C, c, j, ch):
    A = C.A; b = BUF(j % 2); x = XR + 4 * (4 * c + j)
    first = (c == 0 and j == 0)
    if ch == 0:
        for t in range(2):
            A(f"v_mfma_f32_32x32x16_bf16 {v(ACC(t),16)}, {v(b+4*t,4)}, {v(x,4)}, {'0' if first else v(ACC(t),16)}")
        if j == 0:
            for t in range(2):
                for q in range(4): A(f"v_dot2c_f32_bf16 v{21+t}, s{S_ONES}, v{b+4*t+q}")
    else:
        A(f"v_mfma_f32_32x32x16_bf16 {v(ACC(0),16)}, {v(x,4)}, {v(b,4)}, {'0' if first else v(ACC(0),16)}")
        for q in range(4):
            A(f"v_dot2c_f32_bf16 v19, s{S_ONES}, v{x+q}\nv_dot2c_f32_bf16 v20, v{x+q}, v{x+q}")
        if j == 0:
            for q in range(4): A(f"v_dot2c_f32_bf16 v21, s{S_ONES}, v{b+q}")

def rd_b(C, c, j):
    A = C.A; slot = (c % 5) * SLOT; b = BUF(j % 2); tag = ("r", c, j)
    A(f"s_add_u32 s48, s{S_K3072+j}, {slot}\nv_add_u32 v16, s48, v15")
    for t in range(3):
        for u in range(2):
            A(f"ds_read_b64_tr_b16 {v(b+4*t+2*u,2)}, v16 offset:{768*u+32*t}"); C.lg.add(tag)

def mm_b(C, c, j):
    A = C.A; b = BUF(j % 2); x = XR + 4 * (4 * (c - 8) + j)
    first = (c == 8 and j == 0)
    for t in range(3):
        A(f"v_mfma_f32_32x32x16_bf16 {v(ACC(t),16)}, {v(b+4*t,4)}, {v(x,4)}, {'0' if first else v(ACC(t),16)}")
    if j == 0:
        for t in range(3):
            for q in range(4): A(f"v_dot2c_f32_bf16 v{21+t}, s{S_ONES}, v{b+4*t+q}")

def top(C, c, hook=None):
    C.vwait(("c", c))
    C.A("s_barrier")
    if hook: hook()
    if c >= 1 and c + 4 <= 15:
        dma_ab(C, c + 4)

def phase_a_path(C, ch, stmod):
    A = C.A
    for c in range(8):
        top(C, c)
        rd_a(C, c, 0, ch)
        if c > 0: mm_a(C, c - 1, 3, ch)
        for j in range(3):
            rd_a(C, c, j + 1, ch)
            C.lwait(("r", c, j))
            mm_a(C, c, j, ch)
        C.lwait0()
    mm_a(C, 7, 3, ch)
    A.c("phase A epilogue")
    A(f"""v_lshlrev_b32 v26, 4, v1
    s_lshl_b32 s48, s{S_RT}, 2
    s_add_u32 s48, s48, {CSX}
    v_add_u32 v27, s48, v26
    s_lshl_b32 s50, s{S_RT}, 8
    s_add_u32 s50, s50, {STA}
    v_and_b32 v28, 31, v1
    v_lshl_add_u32 v28, v28, 2, s50""")
    if ch == 0:
        A("ds_write_b32 v27, v21\nds_write_b32 v27, v22 offset:1024")
    else:
        A(f"""ds_write_b32 v27, v21 offset:2048
        v_mov_b32 v29, v19
        v_mov_b32 v30, v20
        s_nop 1
        v_permlane32_swap_b32 v19, v29
        v_permlane32_swap_b32 v20, v30
        s_nop 1
        v_add_f32 v19, v19, v29
        v_add_f32 v20, v20, v30
        v_mul_f32 v24, {f2u(-1.0/512):#x}, v19
        v_mul_f32 v20, {f2u(1.0/512):#x}, v20
        v_fma_f32 v20, -v24, v24, v20
        v_max_f32 v20, 0, v20
        v_add_f32 v20, {f2u(1e-5):#x}, v20
        v_rsq_f32 v25, v20
        ds_write_b32 v28, v24
        s_nop 0
        ds_write_b32 v28, v25 offset:128""")
    C.lwait0()
    top(C, 8)
    rd_b(C, 8, 0)
    A(f"v_add_u32 v26, {CSX}, v26")
    if ch == 0:
        A("""ds_read_b128 v[104:107], v26
        ds_read_b128 v[108:111], v26 offset:1024
        ds_read_b32 v24, v28
        ds_read_b32 v25, v28 offset:128""")
        C.lwait0()
        A(f"""v_add_f32 v104, v104, v105
        v_add_f32 v106, v106, v107
        v_add_f32 v108, v108, v109
        v_add_f32 v110, v110, v111
        v_add_f32 v104, v104, v106
        v_add_f32 v108, v108, v110
        s_and_b32 s51, s{S_CB}, 1
        s_cmp_eq_u32 s51, 0
        v_mfma_f32_32x32x2_f32 {v(ACC(0),16)}, v104, v24, {v(ACC(0),16)}
        v_mfma_f32_32x32x2_f32 {v(ACC(1),16)}, v108, v24, {v(ACC(1),16)}
        s_cselect_b32 s48, {f2u(0.25*LOG2E):#x}, 1.0
        v_mul_f32 v30, s48, v25
        s_cselect_b64 vcc, -1, 0""")
        A.c("store lane slot: Q natural, K with token bits 2 and 3 exchanged")
        A(f"""v_and_b32 v27, 0x33, v1
        v_bfe_u32 v29, v1, 2, 1
        v_lshl_or_b32 v27, v29, 3, v27
        v_bfe_u32 v29, v1, 3, 1
        v_lshl_or_b32 v27, v29, 2, v27
        v_cndmask_b32 v27, v27, v1, vcc
        v_lshlrev_b32 v27, 4, v27
        s_lshl_b32 s48, s51, 21
        s_lshr_b32 s49, s{S_CB}, 1
        s_lshl_b32 s49, s49, 18
        s_add_u32 s48, s48, s49
        s_lshl_b32 s49, s{S_RB}, 2
        s_add_u32 s49, s49, s{S_RT}
        s_lshl_b32 s49, s49, 10
        s_add_u32 s48, s48, s49
        s_nop 4""")
        for t in range(2):
            for hh in range(2):
                a = ACC(t) + 8 * hh; o = 112 + 4 * ((2 * t + hh) % 2)
                for q in range(4):
                    A(f"v_pk_mul_f32 {v(a+2*q,2)}, {v(a+2*q,2)}, v[30:31] op_sel_hi:[1,0]")
                for q in range(4):
                    A(f"v_cvt_pk_bf16_f32 v{o+q}, v{a+2*q}, v{a+2*q+1}")
                A(f"buffer_store_dwordx4 {v(o,4)}, v27, s[{sWS}:{sWS+3}], s48 offen {stmod}"); C.vadd("stA")
                A(f"s_add_u32 s48, s48, 0x10000")
    else:
        A(f"""v_lshrrev_b32 v29, 5, v1
        v_lshl_add_u32 v29, v29, 4, s50
        ds_read_b128 v[104:107], v26 offset:2048""")
        for q in range(4):
            A(f"ds_read_b128 {v(108+4*q,4)}, v29 offset:{128+32*q}")
        C.lwait0()
        A(f"""v_add_f32 v104, v104, v105
        v_add_f32 v106, v106, v107
        v_add_f32 v104, v104, v106
        v_and_b32 v27, 15, v1
        v_lshlrev_b32 v27, 4, v27
        v_mfma_f32_32x32x2_f32 {v(ACC(0),16)}, v24, v104, {v(ACC(0),16)}
        v_lshrrev_b32 v29, 5, v1
        v_lshl_add_u32 v27, v29, 8, v27
        v_bfe_u32 v29, v1, 4, 1
        v_lshl_add_u32 v27, v29, 16, v27
        s_lshl_b32 s48, s{S_CB}, 17
        s_lshl_b32 s49, s{S_RB}, 2
        s_add_u32 s49, s49, s{S_RT}
        s_lshl_b32 s49, s49, 10
        s_add_u32 s48, s48, s49
        s_add_u32 s48, s48, {VF}
        s_nop 8""")
        a = ACC(0)
        for jj in range(2):
            for q in range(4):
                A(f"v_pk_mul_f32 {v(a+8*jj+2*q,2)}, {v(a+8*jj+2*q,2)}, {v(108+8*jj+2*q,2)}")
            for q in range(4):
                A(f"v_cvt_pk_bf16_f32 v{ACC(1)+4*jj+q}, v{a+8*jj+2*q}, v{a+8*jj+2*q+1}")
            A(f"buffer_store_dwordx4 {v(ACC(1)+4*jj,4)}, v27, s[{sWS}:{sWS+3}], s48 offen offset:{512*jj} {stmod}"); C.vadd("stA")
    A("v_mov_b32 v21, 0\nv_mov_b32 v22, 0\nv_mov_b32 v23, 0")

def phase_ab(C, stmod="", hooks=None):
    A = C.A; hooks = hooks or {}
    ab_setup(A)
    dma_ab(C, 0)
    ab_setup2(A)
    for c in range(1, 5): dma_ab(C, c)
    l1, lm = A.label("a1"), A.label("am")
    A(f"s_cmp_lg_u32 s{S_CH}, 0\ns_cbranch_scc1 {l1}")
    base = C.vm[0]
    C.vm = [base.copy()]
    phase_a_path(C, 0, stmod)
    vm0 = C.vm[0]; lg0 = C.lg.copy()
    A(f"s_branch {lm}\n{l1}:")
    C.vm = [base.copy()]; C.lg = Cnt(15)
    phase_a_path(C, 1, stmod)
    A(f"{lm}:")
    C.vm = [vm0, C.vm[0]]
    A.c("phase B main")
    for c in range(8, 16):
        if c > 8:
            top(C, c, hooks.get(("top", c)))
            rd_b(C, c, 0)
            mm_b(C, c - 1, 3)
        for j in range(3):
            rd_b(C, c, j + 1)
            C.lwait(("r", c, j))
            mm_b(C, c, j)
        C.lwait0()
    mm_b(C, 15, 3)
    A.c("phase B epilogue")
    A(f"""v_lshlrev_b32 v26, 4, v1
    s_mul_i32 s49, s{S_CH}, 3072
    s_add_u32 s49, s49, {CSX}
    s_lshl_b32 s48, s{S_RT}, 2
    s_add_u32 s48, s48, s49
    v_add_u32 v27, s48, v26
    v_add_u32 v28, s49, v26
    ds_write_b32 v27, v21
    ds_write_b32 v27, v22 offset:1024
    ds_write_b32 v27, v23 offset:2048""")
    C.lwait0()
    A("s_barrier")
    if hooks.get("b_epi"): hooks["b_epi"]()
    for t in range(3): A(f"ds_read_b128 {v(104+4*t,4)}, v28 offset:{1024*t}")
    A(f"""v_mul_f32 v30, {f2u(-LOG2E):#x}, v25
    v_mul_f32 v28, v25, v25
    v_rcp_f32 v28, v28
    s_lshl_b32 s48, s{S_RB}, 2
    s_add_u32 s48, s48, s{S_RT}
    s_mul_i32 s48, s48, 86
    s_mul_i32 s49, s{S_CB}, 6
    s_mul_i32 s50, s{S_CH}, 3
    s_add_u32 s49, s49, s50
    s_add_u32 s48, s48, s49
    s_lshl_b32 s48, s48, 10
    s_add_u32 s48, s48, {HF}""")
    C.lwait0()
    for t in range(3):
        A(f"""v_add_f32 v{104+4*t}, v{104+4*t}, v{105+4*t}
        v_add_f32 v{106+4*t}, v{106+4*t}, v{107+4*t}""")
    for t in range(3):
        A(f"v_add_f32 v{104+4*t}, v{104+4*t}, v{106+4*t}")
    A("s_nop 1")
    for t in range(3):
        A(f"v_mfma_f32_32x32x2_f32 {v(ACC(t),16)}, v{104+4*t}, v24, {v(ACC(t),16)}")
    A("s_nop 15")
    for t in range(3):
        g = ACC(t); u = g + 8; T = 104 + 8 * (t % 2); o = 120 + 4 * (t % 2)
        if t == 1: A("s_nop 0")
        for q in range(4): A(f"v_pk_mul_f32 {v(T+2*q,2)}, {v(g+2*q,2)}, v[30:31] op_sel_hi:[1,0]")
        for q in range(8): A(f"v_exp_f32 v{T+q}, v{T+q}")
        for q in range(4): A(f"v_pk_mul_f32 {v(g+2*q,2)}, {v(g+2*q,2)}, {v(u+2*q,2)}")
        for q in range(4): A(f"v_pk_fma_f32 {v(T+2*q,2)}, {v(T+2*q,2)}, v[28:29], v[28:29] op_sel_hi:[1,0,0]")
        for q in range(8): A(f"v_rcp_f32 v{T+q}, v{T+q}")
        A(f"s_cmp_lt_u32 s49, 86\ns_cselect_b32 s50, s48, 0x80000000")
        for q in range(4): A(f"v_pk_mul_f32 {v(g+2*q,2)}, {v(g+2*q,2)}, {v(T+2*q,2)}")
        for q in range(4): A(f"v_cvt_pk_bf16_f32 v{o+q}, v{g+2*q}, v{g+2*q+1}")
        A(f"buffer_store_dwordx4 {v(o,4)}, v26, s[{sWS}:{sWS+3}], s50 offen {stmod}"); C.vadd("stB")
        A("s_add_u32 s48, s48, 1024\ns_add_u32 s49, s49, 1")

S_HD, S_QB = 42, 43
QR = lambda p: 8 + 4 * p
SR = lambda p: 16 + 16 * p
OR_ = lambda p: 48 + 16 * p
KR = lambda i: 160 + 4 * i
VR = lambda i, j: 192 + 8 * i + 4 * j
OXW = 2304
OXB = 8 * OXW
S_KB, S_VB, S_QBASE = 44, 46, 84

def c_ids(A):
    A(f"s_lshl_b32 s48, s40, 2\ns_lshr_b32 s49, s41, 3\ns_add_u32 s{S_HD}, s48, s49\ns_and_b32 s{S_QB}, s41, 7")

def c_qload(C, t, ldmod):
    A = C.A
    A(f"s_sub_u32 s48, s{S_W}, {t}\ns_and_b32 s48, s48, 7\ns_lshl_b32 s48, s48, 10\ns_add_u32 s48, s48, s{S_QBASE}")
    A(f"buffer_load_dwordx4 {v(QR(t%2),4)}, v2, s[{sWS}:{sWS+3}], s48 offen {ldmod}"); C.vadd(("q", t))

def c_preset(A):
    A.c("V fragment lanes 16-31 / 48-63 hold bf16 ones (softmax denominator rows)")
    for r in range(192, 256): A(f"v_mov_b32 v{r}, s{S_ONES}")

def c_loads(C, ldmod):
    A = C.A
    A(f"""v_lshlrev_b32 v2, 4, v1
    v_and_b32 v3, 15, v1
    v_lshlrev_b32 v3, 4, v3
    v_lshrrev_b32 v4, 5, v1
    v_lshl_add_u32 v3, v4, 8, v3
    s_lshl_b32 s48, s{S_HD}, 16
    s_lshl_b32 s49, s{S_QB}, 13
    s_add_u32 s{S_QBASE}, s48, s49
    s_lshl_b32 s49, s{S_W}, 13
    s_add_u32 s48, s48, s49
    s_add_u32 s{S_KB}, s48, {KF}
    s_add_u32 s{S_KB+1}, s48, {KF+4096}
    s_add_u32 s{S_VB}, s48, {VF}
    s_add_u32 s{S_VB+1}, s48, {VF+4096}""")
    c_qload(C, 0, ldmod)
    for i in range(8):
        A(f"buffer_load_dwordx4 {v(KR(i),4)}, v2, s[{sWS}:{sWS+3}], s{S_KB+i//4} offen offset:{1024*(i%4)} {ldmod}"); C.vadd(("k", i))
        A("s_mov_b32 exec_lo, 0xffff\ns_mov_b32 exec_hi, 0xffff")
        for j in range(2):
            A(f"buffer_load_dwordx4 {v(VR(i,j),4)}, v3, s[{sWS}:{sWS+3}], s{S_VB+i//4} offen offset:{1024*(i%4)+512*j} {ldmod}"); C.vadd(("v", i, j))
        A("s_mov_b64 exec, -1")
    c_qload(C, 1, ldmod)

def phase_c(C, ldmod="", stmod="", oxbase=0, extra=None):
    A = C.A; extra = extra or {}
    A(f"""v_mov_b32 v4, 0xdddddddd
    s_mul_i32 s48, s{S_W}, {OXW}
    s_add_u32 s48, s48, {oxbase}
    v_add_u32 v5, s48, v2
    v_lshl_add_u32 v6, v1, 2, s48""")
    for p in range(2):
        for r in range(9): A(f"v_mov_b32 v{OR_(p)+r}, 0")
    def qk(n):
        t, i = divmod(n, 8)
        if t == 0: C.vwait([("k", i), ("q", 0)])
        elif i == 0: C.vwait(("q", t))
        A(f"v_mfma_f32_32x32x16_bf16 {v(SR(n%2),16)}, {v(KR(i),4)}, {v(QR(t%2),4)}, 0")
    def sm(n, j):
        t, i = divmod(n, 8)
        if t == 0: C.vwait(("v", i, j))
        if i == 0 and j == 0 and t >= 2: C.lwait(("ox", t))
        A(f"v_smfmac_f32_32x32x32_bf16 {v(OR_(t%2),16)}, {v(VR(i,j),4)}, {v(SR(n%2)+8*j,8)}, v4")
    def ox_write(t):
        o = OR_((t - 1) % 2); off = OXB * (t % 2)
        A(f"ds_write_b128 v5, {v(o,4)} offset:{off}"); C.lg.add("oxw")
        A(f"ds_write_b128 v5, {v(o+4,4)} offset:{off+1024}"); C.lg.add("oxw")
        A(f"ds_write_b32 v6, v{o+8} offset:{off+2048}"); C.lg.add("oxw")
    def ox_read(t):
        o = OR_((t + 1) % 2); off = OXB * (t % 2); d = 2 if t < 7 else 1
        A(f"""s_sub_u32 s48, s{S_W}, {d}
        s_and_b32 s48, s48, 7
        s_mul_i32 s48, s48, {OXW}
        s_add_u32 s48, s48, {oxbase}
        v_add_u32 v7, s48, v2""")
        A(f"ds_read_b128 {v(o,4)}, v7 offset:{off}"); C.lg.add(("ox", t + 1))
        A(f"ds_read_b128 {v(o+4,4)}, v7 offset:{off+1024}"); C.lg.add(("ox", t + 1))
        A(f"v_lshl_add_u32 v7, v1, 2, s48")
        A(f"ds_read_b32 v{o+8}, v7 offset:{off+2048}"); C.lg.add(("ox", t + 1))
    qk(0)
    A("s_nop 11")
    for n in range(64):
        t, i = divmod(n, 8)
        sb = SR(n % 2)
        e = lambda k: A(f"v_exp_f32 v{sb+k}, v{sb+k}")
        e(0); e(1)
        if n > 0: sm(n - 1, 1)
        e(2); e(3); e(4)
        if n < 63: qk(n + 1)
        for k in range(5, 10): e(k)
        sm(n, 0)
        e(10); e(11)
        if t >= 1 and i == 1: ox_write(t)
        if t >= 1 and i == 4:
            C.lwait("oxw"); A("s_barrier")
        if t >= 1 and i == 5: ox_read(t)
        if i == 0 and 1 <= t <= 6: c_qload(C, t + 1, ldmod)
        if (t, i) in extra: extra[(t, i)]()
        for k in range(12, 16): e(k)
    A("s_nop 1")
    sm(63, 1)
    C.lwait0()
    A(f"""s_add_u32 s48, s{S_W}, 1
    s_and_b32 s48, s48, 7
    s_lshl_b32 s49, s{S_QB}, 3
    s_add_u32 s48, s48, s49
    s_lshl_b32 s48, s48, 5
    s_add_u32 s48, s48, s{S_HD}
    s_lshl_b32 s48, s48, 10
    s_add_u32 s85, s48, {OF}
    s_mov_b32 s50, {f2u(2.0**-64):#x}
    s_mov_b32 s51, {f2u(2.0**64):#x}
    s_nop 2""")
    o1, o0 = OR_(1), OR_(0)
    for r in (8, 0, 1, 2, 3, 4, 5, 6, 7): A(f"v_add_f32 v{o1+r}, v{o1+r}, v{o0+r}")
    lslow, lfin = A.label("slow"), A.label("fin")
    A(f"""v_cmp_lt_f32 s[52:53], s50, v{o1+8}
    v_cmp_gt_f32 vcc, s51, v{o1+8}
    s_nop 3
    s_and_b64 vcc, vcc, s[52:53]
    s_cmp_eq_u64 vcc, -1
    s_cbranch_scc0 {lslow}
    {lfin}:
    v_rcp_f32 v{o1+8}, v{o1+8}
    s_nop 0""")
    for q in range(4): A(f"v_pk_mul_f32 {v(o1+2*q,2)}, {v(o1+2*q,2)}, {v(o1+8,2)} op_sel_hi:[1,0]")
    for q in range(4): A(f"v_cvt_pk_bf16_f32 v{o0+q}, v{o1+2*q}, v{o1+2*q+1}")
    A(f"buffer_store_dwordx4 {v(o0,4)}, v2, s[{sWS}:{sWS+3}], s85 offen {stmod}"); C.vadd("stO")
    return lslow, lfin

def phase_c_slow(A, lslow, lfin, ldmod=""):
    o1, o0, S, q = OR_(1), OR_(0), SR(0), QR(1)
    l1, l2 = A.label("p1"), A.label("p2")
    A(f"""{lslow}:
    s_waitcnt vmcnt(0)
    s_lshl_b32 s48, s{S_HD}, 16
    s_add_u32 s54, s48, {KF}
    s_add_u32 s55, s48, {VF}
    s_mov_b32 s56, 0
    v_mov_b32 v7, 0xff7fffff
    {l1}:
    s_add_u32 s48, s54, s56
    buffer_load_dwordx4 {v(KR(0),4)}, v2, s[{sWS}:{sWS+3}], s48 offen {ldmod}
    s_waitcnt vmcnt(0)
    v_mfma_f32_32x32x16_bf16 {v(S,16)}, {v(KR(0),4)}, {v(q,4)}, 0
    s_nop 15""")
    for r in range(8): A(f"v_max3_f32 v7, v7, v{S+2*r}, v{S+2*r+1}")
    A(f"""s_add_u32 s56, s56, 1024
    s_cmp_lt_u32 s56, 0x10000
    s_cbranch_scc1 {l1}
    v_mov_b32 v{o0}, v7
    s_nop 1
    v_permlane32_swap_b32 v7, v{o0}
    s_nop 1
    v_max_f32 v7, v7, v{o0}""")
    for r in range(16): A(f"v_sub_f32 v{o0+r}, 0, v7\nv_mov_b32 v{o1+r}, 0")
    A(f"""s_mov_b32 s56, 0
    {l2}:
    s_add_u32 s48, s54, s56
    s_add_u32 s49, s55, s56
    buffer_load_dwordx4 {v(KR(0),4)}, v2, s[{sWS}:{sWS+3}], s48 offen {ldmod}
    s_mov_b32 exec_lo, 0xffff
    s_mov_b32 exec_hi, 0xffff
    buffer_load_dwordx4 {v(VR(0,0),4)}, v3, s[{sWS}:{sWS+3}], s49 offen {ldmod}
    buffer_load_dwordx4 {v(VR(0,1),4)}, v3, s[{sWS}:{sWS+3}], s49 offen offset:512 {ldmod}
    s_mov_b64 exec, -1
    s_waitcnt vmcnt(0)
    v_mfma_f32_32x32x16_bf16 {v(S,16)}, {v(KR(0),4)}, {v(q,4)}, {v(o0,16)}
    s_nop 15""")
    for r in range(16): A(f"v_exp_f32 v{S+r}, v{S+r}")
    A(f"""s_nop 1
    v_smfmac_f32_32x32x32_bf16 {v(o1,16)}, {v(VR(0,0),4)}, {v(S,8)}, v4
    v_smfmac_f32_32x32x32_bf16 {v(o1,16)}, {v(VR(0,1),4)}, {v(S+8,8)}, v4
    s_nop 15
    s_add_u32 s56, s56, 1024
    s_cmp_lt_u32 s56, 0x10000
    s_cbranch_scc1 {l2}
    s_branch {lfin}""")

S_R64, S_C64, S_KQ, S_HB = 42, 43, 44, 45
HR = lambda i: 80 + 4 * i
WB = lambda p: 168 + 8 * p
AF = lambda ct: 184 + 16 * ct
AS = 216
WOR = lambda q: 80 + 4 * q
OB = lambda p: 144 + 4 * p
USLOT = lambda u: (u % 19) * 8192
FXS = 17408
OREG = 73728
V_DW, V_L16, V_TR, V_T, V_XO, V_FIN, V_DWO = 232, 233, 234, 236, 238, 239, 240
V_X = 244

def d_setup(A):
    srd(A, sWD, PTR + 12, 1376 * 512 * 2)
    srd(A, sWO, PTR + 4, 512 * 512 * 2)
    srd(A, sOUT, PTR + 14, 2048 * 512 * 2)
    srd(A, sX, PTR + 0, 2048 * 512 * 2)
    A(f"""s_and_b32 s48, s40, 3
    s_lshl_b32 s48, s48, 3
    s_and_b32 s49, s41, 7
    s_add_u32 s{S_R64}, s48, s49
    s_lshr_b32 s48, s40, 2
    s_lshl_b32 s48, s48, 2
    s_lshr_b32 s49, s41, 3
    s_add_u32 s{S_C64}, s48, s49
    s_and_b32 s{S_RT}, s{S_W}, 1
    s_lshr_b32 s{S_KQ}, s{S_W}, 1
    s_lshl_b32 s{S_W1024}, s{S_W}, 10
    s_lshl_b32 s48, s{S_R64}, 1
    s_add_u32 s48, s48, s{S_RT}
    s_mul_i32 s48, s48, 86
    s_lshl_b32 s48, s48, 10
    s_add_u32 s{S_HB}, s48, {HF}
    v_lshlrev_b32 v{V_L16}, 4, v1
    v_lshrrev_b32 v{V_T}, 3, v1
    v_bfe_u32 v{V_T+1}, v1, 4, 1
    v_lshlrev_b32 v{V_T+1}, 2, v{V_T+1}
    v_and_b32 v{V_DW}, 7, v1
    v_xor_b32 v{V_T+1}, v{V_T+1}, v{V_DW}
    v_lshlrev_b32 v{V_T+1}, 4, v{V_T+1}
    v_lshl_add_u32 v{V_T+1}, v{V_T}, 10, v{V_T+1}
    s_mul_i32 s48, s{S_KQ}, 352
    s_lshl_b32 s49, s{S_RT}, 3
    s_add_u32 s48, s48, s49
    s_lshl_b32 s48, s48, 10
    s_lshl_b32 s49, s{S_C64}, 7
    s_add_u32 s48, s48, s49
    v_add_u32 v{V_DW}, s48, v{V_T+1}
    s_lshl_b32 s48, s{S_W}, 13
    s_add_u32 s48, s48, s49
    v_add_u32 v{V_DWO}, s48, v{V_T+1}
    v_lshrrev_b32 v{V_T}, 3, v0
    s_lshl_b32 s48, s{S_R64}, 6
    v_add_u32 v{V_XO}, s48, v{V_T}
    v_and_b32 v{V_T+1}, 7, v1
    v_lshlrev_b32 v{V_XO}, 10, v{V_XO}
    v_lshl_add_u32 v{V_XO}, v{V_T+1}, 4, v{V_XO}
    v_add_u32 v{V_XO}, s49, v{V_XO}
    s_movk_i32 s48, 272
    v_mul_u32_u24 v{V_FIN}, s48, v{V_T}
    v_lshl_add_u32 v{V_FIN}, v{V_T+1}, 5, v{V_FIN}
    v_lshrrev_b32 v{V_T}, 5, v1
    v_bfe_u32 v{V_T+1}, v1, 2, 2
    v_lshl_add_u32 v{V_T}, v{V_T}, 2, v{V_T+1}
    v_lshlrev_b32 v{V_TR}, 7, v{V_T}
    v_bfe_u32 v{V_T}, v1, 3, 1
    v_lshl_add_u32 v{V_TR}, v{V_T}, 6, v{V_TR}
    v_bfe_u32 v{V_T}, v1, 4, 1
    v_lshl_add_u32 v{V_TR}, v{V_T}, 5, v{V_TR}
    v_and_b32 v{V_T}, 3, v1
    v_lshl_add_u32 v{V_TR}, v{V_T}, 3, v{V_TR}
    v_xor_b32 v{V_TR+1}, 64, v{V_TR}""")

def d_unit(C, u):
    A = C.A
    if u < 22:
        A(f"s_add_u32 m0, s{S_W1024}, {USLOT(u)}\ns_mov_b32 s49, {16384*u}")
        A(f"buffer_load_dwordx4 v{V_DW}, s[{sWD}:{sWD+3}], s49 offen lds")
    else:
        A(f"s_add_u32 m0, s{S_W1024}, {USLOT(u)}\ns_mov_b32 s49, {65536*(u-22)}")
        A(f"buffer_load_dwordx4 v{V_DWO}, s[{sWO}:{sWO+3}], s49 offen lds")
    C.vadd(("u", u))

def d_hload(C, i, ldmod, reg=None):
    A = C.A
    A(f"s_mul_i32 s48, s{S_KQ}, 22\ns_add_u32 s48, s48, {i}\ns_min_u32 s48, s48, 85\ns_lshl_b32 s48, s48, 10\ns_add_u32 s48, s48, s{S_HB}")
    A(f"buffer_load_dwordx4 {v(HR(i),4)}, v{V_L16}, s[{sWS}:{sWS+3}], s48 offen {ldmod}"); C.vadd(("h", i))

def d_xload(C):
    C.A(f"buffer_load_dwordx4 {v(V_X,4)}, v{V_XO}, s[{sX}:{sX+3}], 0 offen"); C.vadd("x")

def phase_d(C, ldmod="", groups=((0, 4), (4, 8), (8, 12), (12, 16), (16, 19), (19, 22)), wait_o=None):
    A = C.A
    A(f"s_lshl_b32 s46, s{S_KQ}, 11")
    def rd(i):
        b = WB(i % 2)
        A(f"s_add_u32 s48, s46, {USLOT(i)}")
        for ct in range(2):
            A(f"v_add_u32 v{V_T+ct}, s48, v{V_TR+ct}")
        for ct in range(2):
            for u in range(2):
                A(f"ds_read_b64_tr_b16 {v(b+4*ct+2*u,2)}, v{V_T+ct} offset:{1024*u}"); C.lg.add(("r", i))
    def mm(i):
        b = WB(i % 2)
        for ct in range(2):
            A(f"v_mfma_f32_32x32x16_bf16 {v(AF(ct),16)}, {v(b+4*ct,4)}, {v(HR(i),4)}, {'0' if i == 0 else v(AF(ct),16)}")
    nxt = 19
    for gi, (a, b) in enumerate(groups):
        C.vwait([("u", i) for i in range(a, b)] + [("h", i) for i in range(a, b)])
        A("s_barrier")
        while nxt < 30 and nxt - 19 < a:
            d_unit(C, nxt); nxt += 1
        rd(a)
        if a > 0: mm(a - 1)
        for i in range(a, b - 1):
            rd(i + 1)
            C.lwait(("r", i))
            mm(i)
        C.lwait0()
    assert nxt == 30
    mm(21)
    A.c("wo fragments into registers; wave = (tile, k half)")
    C.vwait([("u", u) for u in range(22, 30)])
    A("s_barrier")
    A(f"""s_lshr_b32 s47, s{S_W}, 2
    s_bfe_u32 s50, s{S_W}, 0x10001
    s_cmp_eq_u32 s50, 0
    s_cselect_b64 vcc, -1, 0
    v_cndmask_b32 v{V_TR}, v{V_TR+1}, v{V_TR}, vcc
    s_mul_i32 s48, s47, {4*8192}
    s_add_u32 s48, s48, {USLOT(22)}
    v_add_u32 v{V_TR}, s48, v{V_TR}""")
    for q in range(16):
        for u in range(2):
            A(f"ds_read_b64_tr_b16 {v(WOR(q)+2*u,2)}, v{V_TR} offset:{2048*q+1024*u}")
        if q % 4 == 3: A("s_waitcnt lgkmcnt(4)")
    C.lwait0()
    A("s_barrier")
    A.c("publish f partials; fetch o fragments")
    if wait_o: wait_o()
    A(f"""s_and_b32 s48, s{S_W}, 1
    s_lshl_b32 s49, s{S_R64}, 1
    s_add_u32 s49, s49, s48
    s_lshl_b32 s49, s49, 5
    s_lshl_b32 s48, s48, 5
    s_bfe_u32 s51, s{S_W}, 0x10001
    s_lshl_b32 s51, s51, 4
    s_lshr_b32 s52, s{S_W}, 2
    s_add_u32 s51, s51, s52
    s_add_u32 s48, s48, s51
    s_add_u32 s49, s49, s51
    s_lshl_b32 s48, s48, 10
    s_lshl_b32 s49, s49, 10
    s_add_u32 s48, s48, {OREG}
    s_add_u32 s49, s49, {OF}""")
    for q in range(8):
        A(f"s_add_u32 m0, s48, {2048*q}\ns_add_u32 s52, s49, {2048*q}")
        A(f"buffer_load_dwordx4 v{V_L16}, s[{sWS}:{sWS+3}], s52 offen {ldmod} lds"); C.vadd(("o", q))
    A(f"""v_and_b32 v{V_T}, 31, v1
    s_lshl_b32 s48, s{S_RT}, 5
    v_add_u32 v{V_T}, s48, v{V_T}
    s_movk_i32 s48, 272
    v_mul_u32_u24 v{V_T}, s48, v{V_T}
    v_lshrrev_b32 v{V_T+1}, 5, v1
    v_lshl_add_u32 v{V_T}, v{V_T+1}, 4, v{V_T}
    s_mul_i32 s48, s{S_KQ}, {FXS}
    v_add_u32 v{V_T+1}, s48, v{V_T}""")
    for ct in range(2):
        for j in range(4):
            A(f"ds_write_b128 v{V_T+1}, {v(AF(ct)+4*j,4)} offset:{128*ct+32*j}")
    C.lwait0()
    A("s_barrier")
    F = 184
    for kq in range(4):
        for hh in range(2):
            A(f"ds_read_b128 {v(F+8*kq+4*hh,4)}, v{V_FIN} offset:{FXS*kq+16*hh}")
    C.lwait0()
    for q in range(4):
        A(f"v_pk_add_f32 {v(F+2*q,2)}, {v(F+2*q,2)}, {v(F+8+2*q,2)}\nv_pk_add_f32 {v(F+16+2*q,2)}, {v(F+16+2*q,2)}, {v(F+24+2*q,2)}")
    for q in range(4): A(f"v_pk_add_f32 {v(F+2*q,2)}, {v(F+2*q,2)}, {v(F+16+2*q,2)}")
    for q in range(8): A(f"v_mul_f32 v{F+8+q}, {f2u(-LOG2E):#x}, v{F+q}")
    for q in range(8): A(f"v_exp_f32 v{F+8+q}, v{F+8+q}")
    for q in range(8): A(f"v_add_f32 v{F+8+q}, 1.0, v{F+8+q}")
    for q in range(8): A(f"v_rcp_f32 v{F+8+q}, v{F+8+q}")
    A("s_nop 0")
    for q in range(8): A(f"v_mul_f32 v{F+q}, v{F+q}, v{F+8+q}")
    C.vwait("x")
    for q in range(4):
        A(f"v_lshlrev_b32 v{F+8+2*q}, 16, v{V_X+q}\nv_and_b32 v{F+9+2*q}, 0xffff0000, v{V_X+q}")
    A.c("wo GEMM")
    A(f"""s_and_b32 s48, s{S_W}, 1
    s_lshl_b32 s48, s48, 1
    s_add_u32 s48, s48, s47
    s_lshl_b32 s48, s48, 14
    s_add_u32 s48, s48, {OREG}
    v_add_u32 v{V_T+1}, s48, v{V_L16}""")
    C.vwait([("o", q) for q in range(8)])
    A("s_barrier")
    for q in range(4):
        A(f"ds_read_b128 {v(OB(q),4)}, v{V_T+1} offset:{1024*q}"); C.lg.add(("o", q))
    for q in range(16):
        C.lwait(("o", q))
        A(f"v_mfma_f32_32x32x16_bf16 {v(AS,16)}, {v(WOR(q),4)}, {v(OB(q%4),4)}, {'0' if q == 0 else v(AS,16)}")
        if q + 4 < 16:
            A(f"ds_read_b128 {v(OB(q%4),4)}, v{V_T+1} offset:{1024*(q+4)}"); C.lg.add(("o", q + 4))
    A(f"""s_mul_i32 s48, s47, {FXS}
    s_lshl_b32 s49, s50, 7
    s_add_u32 s48, s48, s49
    v_add_u32 v{V_T+1}, s48, v{V_T}
    s_nop 8""")
    for j in range(4): A(f"ds_write_b128 v{V_T+1}, {v(AS+4*j,4)} offset:{32*j}")
    C.lwait0()
    A("s_barrier")
    G = 200
    for kh in range(2):
        for hh in range(2):
            A(f"ds_read_b128 {v(G+8*kh+4*hh,4)}, v{V_FIN} offset:{FXS*kh+16*hh}")
    C.lwait0()
    for q in range(4): A(f"v_pk_add_f32 {v(G+2*q,2)}, {v(G+2*q,2)}, {v(G+8+2*q,2)}")
    for q in range(4): A(f"v_pk_fma_f32 {v(G+2*q,2)}, {v(G+2*q,2)}, {v(F+2*q,2)}, {v(F+8+2*q,2)}")
    for q in range(4): A(f"v_cvt_pk_bf16_f32 v{G+8+q}, v{G+2*q}, v{G+2*q+1}")
    A(f"buffer_store_dwordx4 {v(G+8,4)}, v{V_XO}, s[{sOUT}:{sOUT+3}], 0 offen"); C.vadd("out")
```

```python
import sys
from phases import *
NAME = "recurrent_scan__mha_block__swiglu_ffn__prompt"
hdr = open("cdna_kernels/%s.s.ref" % NAME).read().split("; Override")[0]
A = Asm()
names = ["proj_kernel", "attn_kernel", "outp_kernel"]
out = hdr + "".join(f"; @launch kernel={n} grid=(256,1,1) block=(512,1,1) lds={l}\n" for n, l in zip(names, (163840, 40960, 163840)))
out += '.amdgcn_target "amdgcn-amd-amdhsa--gfx950"\n.text\n'

prologue(A, names[0]); C = Ctx(A)
phase_ab(C)
epilogue(A, names[0])

prologue(A, names[1]); C = Ctx(A)
c_ids(A); c_preset(A); c_loads(C, "")
ls, lf = phase_c(C)
A("s_endpgm")
phase_c_slow(A, ls, lf)
epilogue(A, names[1])

prologue(A, names[2]); C = Ctx(A)
d_setup(A)
for i in range(19):
    d_unit(C, i); d_hload(C, i, "")
for i in range(19, 22): d_hload(C, i, "")
d_xload(C)
phase_d(C)
epilogue(A, names[2])

out += A.text() + '.section .rodata,"a"\n' + "".join(".p2align 6\n" + kdesc(n) for n in names)
dst = sys.argv[1] if len(sys.argv) > 1 else "cdna_kernels/%s.s" % NAME
open(dst, "w").write(out)
print("wrote", dst, len(out), "bytes")
```

```python
import struct, os, sys
from asmlib import *

QF, KF, VF, OF, HF = 0x000000, 0x200000, 0x400000, 0x600000, 0x800000
F1, F2, F3, EPO = 0xE00000, 0xE10000, 0xE20000, 0xE70000
WS_BYTES = 0x1000000
def f2u(x): return struct.unpack("<I", struct.pack("<f", x))[0]
LOG2E = 1.4426950408889634
OPT = dict(kv.split("=") for kv in os.environ.get("OPT", "").split(",") if kv)

sX, sWQ, sWG, sWS, sWD, sWO, sOUT = 8, 12, 16, 20, 24, 28, 32
S_NON, S_W, S_RT, S_CH, S_ONES, S_XCD, S_I = 3, 36, 37, 38, 39, 40, 41
S_RB, S_CB, S_K2048 = 42, 43, 44
S_HD, S_QB, S_KB, S_VB, S_R64, S_C64 = 56, 57, 58, 60, 62, 63
S_QO, S_KQ, S_RD, S_HB, S_OST, S_F3, S_US, S_HS, S_CNT = 64, 72, 73, 74, 75, 76, 77, 78, 79
S_K1024, S_K3072, S_W2048, S_W1024, S_W512, S_BM = 84, 88, 92, 93, 94, 95
PTR = 64
WS = f"s[{sWS}:{sWS+3}]"
SC = "sc1"

class Cnt:
    def __init__(self, mx): self.q, self.mx = [], mx
    def add(self, tag): self.q.append(tag)
    def need(self, tags):
        if not isinstance(tags, list): tags = [tags]
        last = max([i for i, t in enumerate(self.q) if t in tags], default=-1)
        return min(len(self.q) - 1 - last, self.mx), last >= 0
    def copy(self):
        c = Cnt(self.mx); c.q = list(self.q); return c

class Ctx:
    STR = [96, 97, 100, 101, 80, 81, 82, 83, 0, 1, 6, 7, 84, 85, 86, 87]
    prof = bool(os.environ.get("PROF"))
    def __init__(self, A):
        self.A = A; self.vm = [Cnt(63)]; self.lg = Cnt(15); self.nst = 0
    def vadd(self, tag):
        for c in self.vm: c.add(tag)
    def vwait(self, tags):
        r = [c.need(tags) for c in self.vm]
        assert all(x[1] for x in r), tags
        self.A(f"s_waitcnt vmcnt({min(x[0] for x in r)})")
    def lwait(self, tags):
        n, found = self.lg.need(tags)
        if found:
            self.A(f"s_waitcnt lgkmcnt({n})")
            self.lg.q = self.lg.q[len(self.lg.q) - n:] if n else []
    def lwait0(self):
        self.A("s_waitcnt lgkmcnt(0)"); self.lg.q = []
    def stamp(self, real=False):
        if not self.prof: return
        k = self.nst; self.nst += 1
        self.A(f"{'s_memrealtime' if real else 's_memtime'} s[98:99]\ns_waitcnt lgkmcnt(0)\ns_mov_b32 s{self.STR[k]}, s98")
    def dump(self):
        if not self.prof: return
        A = self.A
        A(f"s_lshl_b32 s98, s2, 3\ns_add_u32 s98, s98, s{S_W}\ns_lshl_b32 s98, s98, 6\ns_add_u32 s98, s98, 0xF00000")
        A("v_mov_b32 v0, 0\ns_mov_b64 exec, 1")
        for k in range(self.nst):
            A(f"v_mov_b32 v1, s{self.STR[k]}\nbuffer_store_dword v1, v0, {WS}, s98 offen offset:{4*k}")
        A("s_mov_b64 exec, -1")

def signal(A, soff):
    l = A.label("sig")
    A(f"""s_cmp_lg_u32 s{S_W}, 0
    s_cbranch_scc1 {l}
    s_mov_b64 s[4:5], exec
    s_mov_b64 exec, 1
    v_mov_b32 v16, s{S_NON}
    buffer_store_dword v16, off, {WS}, {soff} {SC}
    s_mov_b64 exec, s[4:5]
    {l}:""")

def poll_issue(C, vf, va, mask):
    C.A(f"s_mov_b64 exec, {mask:#x}\nbuffer_load_dword v{vf}, v{va}, {WS}, 0 offen {SC}\ns_mov_b64 exec, -1")
    C.vadd("poll")

def poll_check(C, vf, va, mask):
    A = C.A; lo, lp = A.label("pok"), A.label("psp")
    C.vwait("poll")
    for c in C.vm: c.q = ["old" if t == "poll" else t for t in c.q]
    A(f"""s_mov_b64 exec, {mask:#x}
    v_cmp_ne_u32 vcc, s{S_NON}, v{vf}
    s_mov_b32 s{S_CNT}, 40000
    s_cbranch_vccz {lo}
    {lp}:
    s_sleep 1
    buffer_load_dword v{vf}, v{va}, {WS}, 0 offen {SC}
    s_sub_u32 s{S_CNT}, s{S_CNT}, 1
    s_waitcnt vmcnt(0)
    v_cmp_ne_u32 vcc, s{S_NON}, v{vf}
    s_cmp_eq_u32 s{S_CNT}, 0
    s_cbranch_scc1 {lo}
    s_cbranch_vccnz {lp}
    {lo}:
    s_mov_b64 exec, -1""")

SLOT = 28672
STA = 5 * SLOT
CSX = 157696
XR = 128
BUF = lambda s: 32 + 12 * (s % 3)
ACC = lambda j: 68 + 16 * j
SEL = 116
CS = lambda t: 120 + 4 * t
def CSR(t): return 120 + 4 * t if t < 2 else 28
RS = 24
V_MU, V_R = 19, 20

def setup0(A):
    A(f"""v_lshrrev_b32 v1, 6, v0
    s_and_b32 s{S_XCD}, s2, 7
    s_lshr_b32 s{S_I}, s2, 3
    v_readfirstlane_b32 s{S_W}, v1
    v_and_b32 v1, 63, v0
    s_and_b32 s48, s{S_XCD}, 1
    s_lshl_b32 s48, s48, 3
    s_and_b32 s49, s{S_I}, 7
    s_add_u32 s{S_RB}, s48, s49
    s_lshr_b32 s48, s{S_XCD}, 1
    s_lshl_b32 s48, s48, 2
    s_lshr_b32 s49, s{S_I}, 3
    s_add_u32 s{S_CB}, s48, s49
    s_lshl_b32 s{S_W2048}, s{S_W}, 11
    s_lshl_b32 s{S_W1024}, s{S_W}, 10
    s_lshl_b32 s{S_W512}, s{S_W}, 9
    v_lshrrev_b32 v26, 3, v1
    v_lshrrev_b32 v27, 4, v1
    v_and_b32 v28, 7, v1
    v_xor_b32 v29, v28, v27
    v_lshlrev_b32 v29, 4, v29
    s_lshl_b32 s48, s{S_RB}, 7
    s_lshl_b32 s49, s{S_W}, 4
    s_add_u32 s48, s48, s49
    v_add_u32 v2, s48, v26
    v_lshl_add_u32 v2, v2, 10, v29
    v_xor_b32 v3, 64, v2
    v_add_u32 v3, 0x2000, v3
    s_lshr_b32 s50, s{S_CB}, 1
    s_and_b32 s51, s{S_CB}, 1
    s_lshl_b32 s48, s51, 10
    s_lshl_b32 s49, s50, 7
    s_add_u32 s52, s48, s49
    s_lshl_b32 s48, s51, 6
    s_add_u32 s53, s48, s49
    s_add_u32 s53, s53, 2048
    s_lshl_b32 s54, s{S_W}, 3
    s_movk_i32 s55, 3072
    v_and_b32 v27, 1, v27
    v_lshlrev_b32 v27, 2, v27
    v_xor_b32 v27, v27, v28
    v_lshlrev_b32 v27, 4, v27
    v_add_u32 v4, s54, v26
    v_mul_u32_u24 v4, s55, v4
    v_add3_u32 v4, v4, v27, s52
    v_bfe_u32 v5, v1, 2, 3
    v_add_u32 v5, s54, v5
    v_mul_u32_u24 v5, s55, v5
    v_and_b32 v27, 3, v1
    v_lshlrev_b32 v27, 4, v27
    v_add3_u32 v5, v5, v27, s53""")

def setup1(A):
    A(f"s_and_b32 s{S_RT}, s{S_W}, 3\ns_lshr_b32 s{S_CH}, s{S_W}, 2\ns_mov_b32 s{S_ONES}, 0x3f803f80")
    srd(A, sWS, PTR + 18, WS_BYTES)
    srd(A, sWD, PTR + 12, 1376 * 512 * 2)
    srd(A, sWO, PTR + 4, 512 * 512 * 2)
    srd(A, sOUT, PTR + 14, 2048 * 512 * 2)
    A(f"s_cmp_eq_u32 s{S_CH}, 0")
    A(f"s_cselect_b32 s{sWG}, s{PTR+8}, s{PTR+10}\ns_cselect_b32 s{sWG+1}, s{PTR+9}, s{PTR+11}")
    A(f"s_and_b32 s{sWG+1}, s{sWG+1}, 0xffff\ns_mov_b32 s{sWG+2}, {512*1376*2:#x}\ns_mov_b32 s{sWG+3}, 0x00020000")
    for j in range(4):
        A(f"""s_xor_b32 s48, s{S_RT}, {j}
        s_lshl_b32 s{S_K2048+j}, s48, 11
        s_lshl_b32 s{S_K1024+j}, s48, 10
        s_mul_i32 s{S_K3072+j}, s48, 3072""")
    A.c("LDS read addresses: v9..v12 x, v13/v14 wqkv, v15 gate/up; selector operand")
    A(f"""v_and_b32 v26, 31, v1
    v_lshrrev_b32 v27, 5, v1
    v_bfe_u32 v28, v1, 1, 3
    v_xor_b32 v28, v28, v27
    s_lshl_b32 s48, s{S_RT}, 1
    v_xor_b32 v28, s48, v28
    v_lshlrev_b32 v28, 4, v28
    s_lshl_b32 s48, s{S_RT}, 12
    v_lshlrev_b32 v26, 7, v26
    v_add3_u32 v9, v26, v28, s48
    v_xor_b32 v10, 32, v9
    v_xor_b32 v11, 64, v9
    v_xor_b32 v12, 0x60, v9
    v_bfe_u32 v26, v1, 2, 2
    v_lshl_add_u32 v26, v27, 3, v26
    v_bfe_u32 v28, v1, 4, 1
    v_and_b32 v29, 3, v1
    v_lshlrev_b32 v29, 3, v29
    v_lshl_add_u32 v30, v28, 5, v29
    v_bfe_u32 v31, v1, 3, 1
    v_lshlrev_b32 v31, 6, v31
    v_lshlrev_b32 v13, 7, v26
    v_add3_u32 v13, v13, v30, v31
    v_add_u32 v13, 0x4000, v13
    v_xor_b32 v14, 64, v13
    v_lshl_add_u32 v31, v26, 6, v30
    v_add_u32 v31, 0x6000, v31
    s_movk_i32 s48, 192
    v_mul_u32_u24 v15, s48, v26
    s_movk_i32 s48, 12320
    v_mul_u32_u24 v26, s48, v28
    v_add3_u32 v15, v15, v26, v29
    s_mul_i32 s48, s{S_CH}, 96
    v_add_u32 v15, s48, v15
    s_cmp_eq_u32 s{S_CH}, 0
    s_cselect_b64 vcc, -1, 0
    v_cndmask_b32 v13, v31, v13, vcc
    v_and_b32 v26, 7, v1
    v_cmp_eq_u32 vcc, v26, v28
    v_mov_b32 v27, s{S_ONES}
    v_mov_b32 v21, 0
    v_mov_b32 v22, 0
    v_cndmask_b32 v{SEL}, 0, v27, vcc
    v_cndmask_b32 v{SEL+1}, 0, v27, vcc
    v_cndmask_b32 v{SEL+2}, 0, v27, vcc
    v_cndmask_b32 v{SEL+3}, 0, v27, vcc""")

def setup2(A):
    A.c("gate/up DMA offsets v6..v8")
    A(f"""s_mul_i32 s48, s{S_CB}, 192
    s_mul_i32 s49, s{S_RT}, {16*2752}
    s_add_u32 s48, s48, s49
    s_movk_i32 s55, 2752""")
    for m in range(3):
        A(f"""v_add_u32 v26, {64*m}, v1
        v_mul_u32_u24 v27, 171, v26
        v_lshrrev_b32 v27, 11, v27
        v_mul_u32_u24 v28, 12, v27
        v_sub_u32 v26, v26, v28
        v_lshlrev_b32 v26, 4, v26
        v_mul_u32_u24 v27, s55, v27
        v_add3_u32 v{6+m}, v26, v27, s48""")
    A(f"""s_mul_i32 s{S_BM}, s{S_CH}, 12320
    s_mul_i32 s48, s{S_RT}, 3072
    s_add_u32 s{S_BM}, s{S_BM}, s48""")

def dma_ops(C, c):
    A = C.A; slot = (c % 5) * SLOT; tag = ("c", c)
    def op(m0s, m0o, soff, va, rs, half=False):
        def f():
            A(f"s_add_u32 m0, s{m0s}, {m0o}\ns_mov_b32 s49, {soff}")
            if half: A("s_mov_b32 exec_hi, 0")
            A(f"buffer_load_dwordx4 v{va}, s[{rs}:{rs+3}], s49 offen lds"); C.vadd(tag)
            if half: A("s_mov_b32 exec_hi, -1")
        return f
    if c < 8:
        return [op(S_W2048, slot, 128 * c, 2, sX), op(S_W2048, slot + 1024, 128 * c, 3, sX),
                op(S_W1024, slot + 16384, 196608 * c, 4, sWQ), op(S_W512, slot + 24576, 196608 * c, 5, sWQ, True)]
    if c < 16:
        return [op(S_BM, slot + 1024 * m, 176128 * (c - 8), 6 + m, sWG) for m in range(3)]
    return []

def xread(C, s):
    A = C.A; c, j = divmod(s, 4); slot = (c % 5) * SLOT
    if slot < 65536: A(f"ds_read_b128 {v(XR+4*s,4)}, v{9+j} offset:{slot}")
    else: A(f"v_add_u32 v18, {slot}, v{9+j}\nds_read_b128 {v(XR+4*s,4)}, v18")
    C.lg.add(("x", s))

def raddr(C, s, ch):
    A = C.A; c, j = divmod(s, 4); slot = (c % 5) * SLOT
    if s >= 32: A(f"s_add_u32 s48, s{S_K3072+j}, {slot}\nv_add_u32 v16, s48, v15")
    elif ch == 0: A(f"s_add_u32 s48, s{S_K2048+j}, {slot}\nv_add_u32 v16, s48, v13\nv_add_u32 v17, s48, v14")
    else: A(f"s_add_u32 s48, s{S_K1024+j}, {slot}\nv_add_u32 v16, s48, v13")

def wread(C, s, t, ch):
    A = C.A; b = BUF(s) + 4 * t
    for u in range(2):
        if s >= 32: a, o = 16, 768 * u + 32 * t
        elif ch == 0: a, o = 16 + t, 512 * u
        else: a, o = 16, 256 * u
        A(f"ds_read_b64_tr_b16 {v(b+2*u,2)}, v{a} offset:{o}"); C.lg.add(("w", s))

def ntile(s, ch): return 3 if s >= 32 else (2 if ch == 0 else 1)

def slot_ab(C, s, ch, extras):
    A = C.A; c, j = divmod(s, 4); n = s + 2
    x = XR + 4 * (s % 32); b = BUF(s); extras = list(extras)
    C.lwait([("w", s), ("x", s)])
    if n < 64: raddr(C, n, ch)
    xs = []
    if n < 30: xs = [n]
    if n in (28, 29): xs = [n, n + 2]
    nt = ntile(s, ch); nn = ntile(n, ch) if n < 64 else 0
    first = s in (0, 32)
    for t in range(max(nt, nn)):
        if t < nt:
            cop = "0" if first else v(ACC(t), 16)
            if s < 32 and ch == 1: A(f"v_mfma_f32_32x32x16_bf16 {v(ACC(0),16)}, {v(x,4)}, {v(b,4)}, {cop}")
            else: A(f"v_mfma_f32_32x32x16_bf16 {v(ACC(t),16)}, {v(b+4*t,4)}, {v(x,4)}, {cop}")
        if t == 0:
            for xx in xs: xread(C, xx)
        if t < nn: wread(C, n, t, ch)
        if extras: extras.pop(0)()
    lastc = c in (7, 15)
    cst = ([t for t in range(nt)] if j == 0 else []) if lastc else ([j] if j < nt else [])
    for t in cst:
        cz = "0" if c in (0, 8) else v(CSR(t), 4)
        A(f"v_mfma_f32_16x16x32_bf16 {v(CSR(t),4)}, {v(SEL,4)}, {v(b+4*t,4)}, {cz}")
    if s < 32 and ch == 1:
        st = [s] if s < 28 else ([s, s + 2] if s < 30 else [])
        for ss in st:
            xx = XR + 4 * ss
            if ss != s: C.lwait(("x", ss))
            A(f"v_mfma_f32_16x16x32_bf16 {v(RS,4)}, {v(SEL,4)}, {v(xx,4)}, {'0' if ss == 0 else v(RS,4)}")
            for q in range(4):
                A(f"""v_lshlrev_b32 v23, 16, v{xx+q}
                v_and_b32 v18, 0xffff0000, v{xx+q}
                v_fmac_f32 v21, v23, v23
                v_fmac_f32 v22, v18, v18""")
    for e in extras: e()

def top(C, c, more=()):
    C.vwait([("c", c)] + list(more))
    C.A("s_barrier")

def cs_write(C, tiles, tile0):
    A = C.A
    for t in tiles: A(f"v_permlane16_swap_b32 v{CSR(t)}, v{CSR(t)+1}")
    A(f"""v_and_b32 v23, 31, v1
    v_lshlrev_b32 v23, 4, v23
    s_lshl_b32 s48, s{S_RT}, 2
    s_add_u32 s48, s48, {tile0}
    v_add_u32 v18, s48, v23""")
    for k, t in enumerate(tiles):
        A(f"ds_write_b32 v18, v{CSR(t)} offset:{512*k}"); C.lg.add("csw")

def path_a(C, ch):
    A = C.A; n0 = C.nst
    top(C, 0)
    C.stamp()
    for s in (0, 1):
        raddr(C, s, ch); xread(C, s)
        for t in range(ntile(s, ch)): wread(C, s, t, ch)
    pend = dma_ops(C, 3)
    for s in range(32):
        if s % 4 == 2:
            c = (s + 2) // 4
            if c == 8:
                A("s_nop 4")
                cs_write(C, range(ntile(0, ch)), CSX + (0 if ch == 0 else 1024))
                A(f"""s_lshl_b32 s50, s{S_RT}, 8
                s_add_u32 s50, s50, {STA}
                v_and_b32 v17, 31, v1
                v_lshl_add_u32 v17, v17, 2, s50""")
                if ch == 1:
                    A(f"""v_add_f32 v21, v21, v22
                    v_permlane16_swap_b32 v{RS}, v{RS+1}
                    v_mov_b32 v22, v21
                    s_nop 1
                    v_permlane32_swap_b32 v21, v22
                    v_mul_f32 v{V_MU}, {f2u(-1.0/1024):#x}, v{RS}
                    v_add_f32 v21, v21, v22
                    v_mul_f32 v22, {f2u(1.0/512):#x}, v{RS}
                    v_mul_f32 v21, {f2u(1.0/512):#x}, v21
                    v_fma_f32 v21, -v22, v22, v21
                    v_max_f32 v21, 0, v21
                    v_add_f32 v21, {f2u(1e-5):#x}, v21
                    v_rsq_f32 v{V_R}, v21
                    ds_write_b32 v17, v{V_MU}
                    s_nop 0
                    ds_write_b32 v17, v{V_R} offset:128""")
                    C.lg.add("csw"); C.lg.add("csw")
                A(f"v_mov_b32 v22, v17")
                C.lwait("csw")
            top(C, c)
            pend = pend + dma_ops(C, c + 3)
            if c == 4: C.stamp()
        ex = [pend.pop(0)] if pend else []
        if s == 30:
            def rd():
                A(f"v_add_u32 v23, {CSX}, v23")
                if ch == 0:
                    A(f"""ds_read_b128 {v(CSR(0),4)}, v23
                    ds_read_b128 {v(CSR(1),4)}, v23 offset:512
                    ds_read_b32 v{V_MU}, v22
                    ds_read_b32 v{V_R}, v22 offset:128""")
                    for _ in range(4): C.lg.add("csr")
                else:
                    A(f"""v_lshrrev_b32 v18, 5, v1
                    v_lshl_add_u32 v18, v18, 4, s50
                    ds_read_b128 {v(CSR(0),4)}, v23 offset:1024""")
                    C.lg.add("csr")
                    for q in range(4):
                        A(f"ds_read_b128 {v(ACC(2)+4*q,4)}, v18 offset:{128+32*q}"); C.lg.add("csr")
            ex = [rd] + ex
        slot_ab(C, s, ch, ex)
    C.stamp()
    A.c("phase A epilogue")
    C.lwait("csr")
    if ch == 0:
        for t in range(2):
            r = CSR(t)
            A(f"v_add_f32 v{r}, v{r}, v{r+1}\nv_add_f32 v{r+2}, v{r+2}, v{r+3}")
        for t in range(2): A(f"v_add_f32 v{CSR(t)}, v{CSR(t)}, v{CSR(t)+2}")
        A(f"""s_and_b32 s51, s{S_CB}, 1
        s_cmp_eq_u32 s51, 0
        s_cselect_b32 s48, {f2u(0.25*LOG2E):#x}, 1.0
        s_cselect_b64 vcc, -1, 0
        v_mfma_f32_32x32x2_f32 {v(ACC(0),16)}, v{CSR(0)}, v{V_MU}, {v(ACC(0),16)}
        v_mfma_f32_32x32x2_f32 {v(ACC(1),16)}, v{CSR(1)}, v{V_MU}, {v(ACC(1),16)}
        v_mul_f32 v30, s48, v{V_R}""")
        A.c("store lane slot: Q natural, K with token bits 2 and 3 exchanged")
        A(f"""v_and_b32 v27, 0x33, v1
        v_bfe_u32 v29, v1, 2, 1
        v_lshl_or_b32 v27, v29, 3, v27
        v_bfe_u32 v29, v1, 3, 1
        v_lshl_or_b32 v27, v29, 2, v27
        v_cndmask_b32 v27, v27, v1, vcc
        v_lshlrev_b32 v27, 4, v27
        s_lshl_b32 s48, s51, 21
        s_lshr_b32 s49, s{S_CB}, 1
        s_lshl_b32 s49, s49, 18
        s_add_u32 s48, s48, s49
        s_lshl_b32 s49, s{S_RB}, 2
        s_add_u32 s49, s49, s{S_RT}
        s_lshl_b32 s49, s49, 10
        s_add_u32 s48, s48, s49
        s_nop 4""")
        for t in range(2):
            for hh in range(2):
                a = ACC(t) + 8 * hh; o = ACC(2) + 4 * (2 * t + hh)
                for q in range(4): A(f"v_pk_mul_f32 {v(a+2*q,2)}, {v(a+2*q,2)}, v[30:31] op_sel_hi:[1,0]")
                for q in range(4): A(f"v_cvt_pk_bf16_f32 v{o+q}, v{a+2*q}, v{a+2*q+1}")
                A(f"buffer_store_dwordx4 {v(o,4)}, v27, {WS}, s48 offen {SC}"); C.vadd("stA")
                A("s_add_u32 s48, s48, 0x10000")
    else:
        r = CSR(0)
        A(f"""v_add_f32 v{r}, v{r}, v{r+1}
        v_add_f32 v{r+2}, v{r+2}, v{r+3}
        v_and_b32 v27, 15, v1
        v_add_f32 v{r}, v{r}, v{r+2}
        v_lshlrev_b32 v27, 4, v27
        v_lshrrev_b32 v29, 5, v1
        s_nop 1
        v_mfma_f32_32x32x2_f32 {v(ACC(0),16)}, v{V_MU}, v{r}, {v(ACC(0),16)}
        v_lshl_add_u32 v27, v29, 8, v27
        v_bfe_u32 v29, v1, 4, 1
        v_lshl_add_u32 v27, v29, 16, v27
        s_lshl_b32 s48, s{S_CB}, 17
        s_lshl_b32 s49, s{S_RB}, 2
        s_add_u32 s49, s49, s{S_RT}
        s_lshl_b32 s49, s49, 10
        s_add_u32 s48, s48, s49
        s_add_u32 s48, s48, {VF}
        s_nop 9""")
        a = ACC(0)
        for jj in range(2):
            for q in range(4): A(f"v_pk_mul_f32 {v(a+8*jj+2*q,2)}, {v(a+8*jj+2*q,2)}, {v(ACC(2)+8*jj+2*q,2)}")
            for q in range(4): A(f"v_cvt_pk_bf16_f32 v{ACC(1)+4*jj+q}, v{a+8*jj+2*q}, v{a+8*jj+2*q+1}")
            A(f"buffer_store_dwordx4 {v(ACC(1)+4*jj,4)}, v27, {WS}, s48 offen offset:{512*jj} {SC}"); C.vadd("stA")
    A("s_nop 1")
    C.stamp()
    if ch == 0: C.nst = n0
    return pend

VR = lambda i, j: 128 + 8 * i + 4 * j
KR = lambda i: 192 + 4 * i
QR = lambda p: 224 + 4 * p
SR = lambda p: 32 + 16 * p
OR_ = lambda p: 64 + 16 * p
def HR(i): return 8 + 4 * i if i < 6 else (96 + 4 * (i - 6) if i < 14 else (232 + 4 * (i - 14) if i < 20 else 192 + 4 * (i - 20)))
OXW, OXB, OX0 = 2304, 18432, 126976
def OXO(t): return OXB * ((t + 1) % 2)
V_L16, V_IDX, V_W16, V_W4, V_R16, V_R4, V_DW = 2, 4, 5, 6, 7, 3, 0

def c_scalars(A):
    L = [f"""s_lshl_b32 s48, s{S_XCD}, 2
    s_lshr_b32 s49, s{S_I}, 3
    s_add_u32 s{S_HD}, s48, s49
    s_and_b32 s{S_QB}, s{S_I}, 7""",
    f"""s_lshl_b32 s48, s{S_HD}, 16
    s_lshl_b32 s49, s{S_W}, 13
    s_add_u32 s49, s48, s49
    s_add_u32 s{S_KB}, s49, {KF}
    s_add_u32 s{S_KB+1}, s49, {KF+4096}
    s_add_u32 s{S_VB}, s49, {VF}
    s_add_u32 s{S_VB+1}, s49, {VF+4096}
    s_lshl_b32 s49, s{S_QB}, 13
    s_add_u32 s50, s48, s49"""]
    for t in range(0, 8, 2):
        L.append("\n".join(f"s_sub_u32 s48, s{S_W}, {u}\ns_and_b32 s48, s48, 7\ns_lshl_b32 s48, s48, 10\ns_add_u32 s{S_QO+u}, s48, s50" for u in (t, t + 1)))
    L.append(f"""s_add_u32 s48, s{S_W}, 1
    s_and_b32 s48, s48, 7
    s_lshl_b32 s49, s{S_QB}, 3
    s_add_u32 s48, s48, s49
    s_lshl_b32 s48, s48, 5
    s_add_u32 s48, s48, s{S_HD}
    s_lshl_b32 s49, s48, 10
    s_add_u32 s{S_OST}, s49, {OF}
    s_lshl_b32 s49, s48, 7
    s_add_u32 s{S_F3}, s49, {F3}""")
    L.append(f"""s_and_b32 s48, s{S_XCD}, 3
    s_lshl_b32 s48, s48, 3
    s_and_b32 s49, s{S_I}, 7
    s_add_u32 s{S_R64}, s48, s49
    s_lshr_b32 s48, s{S_XCD}, 2
    s_lshl_b32 s48, s48, 2
    s_lshr_b32 s49, s{S_I}, 3
    s_add_u32 s{S_C64}, s48, s49""")
    L.append(f"""s_and_b32 s{S_RD}, s{S_W}, 1
    s_lshr_b32 s{S_KQ}, s{S_W}, 1
    s_lshl_b32 s48, s{S_R64}, 1
    s_add_u32 s48, s48, s{S_RD}
    s_mul_i32 s48, s48, 86
    s_mul_i32 s49, s{S_KQ}, 22
    s_add_u32 s48, s48, s49
    s_lshl_b32 s48, s48, 10
    s_add_u32 s{S_HB}, s48, {HF}""")
    return [(lambda x=x: A(x)) for x in L]

def kv_ops(C):
    A = C.A; ops = []
    def q(t):
        def f():
            A(f"buffer_load_dwordx4 {v(QR(t%2),4)}, v{V_L16}, {WS}, s{S_QO+t} offen {SC}"); C.vadd(("q", t))
        return f
    def k(i):
        def f():
            A(f"buffer_load_dwordx4 {v(KR(i),4)}, v{V_L16}, {WS}, s{S_KB+i//4} offen offset:{1024*(i%4)} {SC}"); C.vadd(("k", i))
        return f
    def vv(i):
        def f():
            A("s_mov_b32 exec_lo, 0xffff\ns_mov_b32 exec_hi, 0xffff")
            for j in range(2):
                A(f"buffer_load_dwordx4 {v(VR(i,j),4)}, v{V_R4}, {WS}, s{S_VB+i//4} offen offset:{1024*(i%4)+512*j} {SC}"); C.vadd(("v", i, j))
            A("s_mov_b64 exec, -1")
        return f
    ops.append(q(0))
    for i in range(8): ops += [k(i), vv(i)]
    ops.append(q(1))
    return ops, q

def phase_b(C, pend):
    A = C.A
    side = c_scalars(A)
    for s in range(32, 64):
        ex = []
        if s % 4 == 2 and s < 62:
            c = (s + 2) // 4
            if c == 11:
                top(C, c, ["stA"])
                A(f"s_lshl_b32 s48, s{S_CB}, 4\ns_add_u32 s48, s48, s{S_RB}\ns_lshl_b32 s48, s48, 8\ns_add_u32 s51, s48, {F1}")
                signal(A, "s51")
            else: top(C, c)
            pend = pend + dma_ops(C, c + 3)
        if s == 62:
            C.lwait("csw"); A("s_barrier")
            def rd():
                A(f"s_mul_i32 s48, s{S_CH}, 1536\ns_add_u32 s48, s48, {CSX}\nv_add_u32 v23, s48, v23")
                for t in range(3):
                    A(f"ds_read_b128 {v(CSR(t),4)}, v23 offset:{512*t}"); C.lg.add("csr")
            ex.append(rd)
        if pend: ex.append(pend.pop(0))
        if side and s >= 34: ex.append(side.pop(0))
        if s == 46:
            def ones():
                A(f"""v_and_b32 v21, 27, v1
                v_mov_b32 v22, s{S_ONES}
                v_cmp_eq_u32 vcc, 16, v21
                v_lshlrev_b32 v{V_L16}, 4, v1
                v_and_b32 v{V_R4}, 15, v1
                v_cndmask_b32 v21, 0, v22, vcc
                v_lshlrev_b32 v{V_R4}, 4, v{V_R4}
                v_lshrrev_b32 v22, 5, v1
                v_lshl_add_u32 v{V_R4}, v22, 8, v{V_R4}""")
            ex.append(ones)
        if 48 <= s < 64:
            def pre(s=s):
                for r in range(4): A(f"v_mov_b32 v{128+4*(s-48)+r}, v21")
            ex.append(pre)
        if s == 56:
            def pa():
                A(f"""s_lshr_b32 s48, s{S_HD}, 2
                s_lshl_b32 s48, s48, 5
                v_and_b32 v5, 1, v1
                v_lshrrev_b32 v4, 1, v1
                s_lshl_b32 s49, s{S_W}, 1
                v_add_u32 v4, s49, v4
                v_lshl_add_u32 v4, v5, 4, v4
                s_lshl_b32 s49, s{S_QB}, 1
                v_add_u32 v5, s49, v5
                v_cmp_gt_u32 vcc, 4, v1
                s_add_u32 s48, s48, {F1 >> 8}
                s_nop 0
                v_cndmask_b32 v4, v5, v4, vcc
                v_add_lshl_u32 v4, v4, s48, 8""")
            ex.append(pa)
        if s == 59: ex.append(lambda: poll_issue(C, 5, 4, 0x3f))
        slot_ab(C, s, 0, ex)
        if s == 60:
            A(f"s_mul_i32 s50, s{S_CH}, 1536\ns_nop 5")
            for t in range(3): A(f"v_permlane16_swap_b32 v{CSR(t)}, v{CSR(t)+1}")
            A(f"""v_and_b32 v23, 31, v1
            v_lshlrev_b32 v23, 4, v23
            s_lshl_b32 s48, s{S_RT}, 2
            s_add_u32 s48, s48, s50
            s_add_u32 s48, s48, {CSX}
            v_add_u32 v18, s48, v23""")
            for t in range(3):
                A(f"ds_write_b32 v18, v{CSR(t)} offset:{512*t}"); C.lg.add("csw")
    assert not pend and not side
    C.stamp()
    A.c("phase B epilogue, attention operand loads interleaved")
    C.lwait("csr")
    for t in range(3):
        r = CSR(t); A(f"v_add_f32 v{r}, v{r}, v{r+1}\nv_add_f32 v{r+2}, v{r+2}, v{r+3}")
    for t in range(3): A(f"v_add_f32 v{CSR(t)}, v{CSR(t)}, v{CSR(t)+2}")
    A(f"""v_mul_f32 v24, {f2u(-LOG2E):#x}, v{V_R}
    v_mul_f32 v26, v{V_R}, v{V_R}""")
    for t in range(3):
        A(f"v_mfma_f32_32x32x2_f32 {v(ACC(t),16)}, v{CSR(t)}, v{V_MU}, {v(ACC(t),16)}")
    A(f"""v_rcp_f32 v26, v26
    s_lshl_b32 s52, s{S_RB}, 2
    s_add_u32 s52, s52, s{S_RT}
    s_mul_i32 s52, s52, 86
    s_mul_i32 s53, s{S_CB}, 6
    s_mul_i32 s50, s{S_CH}, 3
    s_add_u32 s53, s53, s50
    s_add_u32 s52, s52, s53
    s_lshl_b32 s52, s52, 10
    s_add_u32 s52, s52, {HF}""")
    poll_check(C, 5, 4, 0x3f)
    ops, qop = kv_ops(C)
    for _ in range(3): ops.pop(0)()
    def drip():
        if ops: ops.pop(0)()
    for t in range(3):
        g = ACC(t); u = g + 8; T = 32 + 8 * (t % 2); o = 48 + 4 * t
        for q in range(4): A(f"v_pk_mul_f32 {v(T+2*q,2)}, {v(g+2*q,2)}, v[24:25] op_sel_hi:[1,0]")
        for q in range(8):
            A(f"v_exp_f32 v{T+q}, v{T+q}")
            if q % 4 == 3: drip()
        for q in range(4): A(f"v_pk_mul_f32 {v(g+2*q,2)}, {v(g+2*q,2)}, {v(u+2*q,2)}")
        for q in range(4): A(f"v_pk_fma_f32 {v(T+2*q,2)}, {v(T+2*q,2)}, v[26:27], v[26:27] op_sel_hi:[1,0,0]")
        drip()
        for q in range(8):
            A(f"v_rcp_f32 v{T+q}, v{T+q}")
            if q % 4 == 3: drip()
        A("s_cmp_lt_u32 s53, 86\ns_cselect_b32 s50, s52, 0x80000000")
        for q in range(4): A(f"v_pk_mul_f32 {v(g+2*q,2)}, {v(g+2*q,2)}, {v(T+2*q,2)}")
        for q in range(4): A(f"v_cvt_pk_bf16_f32 v{o+q}, v{g+2*q}, v{g+2*q+1}")
        A(f"buffer_store_dwordx4 {v(o,4)}, v{V_L16}, {WS}, s50 offen {SC}"); C.vadd("stB")
        A("s_add_u32 s52, s52, 1024\ns_add_u32 s53, s53, 1")
    while ops: drip()
    return qop

USLOT = lambda u: (u % 19) * 8192

def d_unit(C, u, vwo=None):
    A = C.A
    if u < 22:
        A(f"s_add_u32 m0, s{S_W1024}, {USLOT(u)}\ns_mov_b32 s49, {16384*u}")
        A(f"buffer_load_dwordx4 v{V_DW}, s[{sWD}:{sWD+3}], s49 offen lds")
    else:
        A(f"s_add_u32 m0, s{S_W1024}, {USLOT(u)}\ns_mov_b32 s49, {65536*(u-22)}")
        A(f"buffer_load_dwordx4 v{vwo}, s[{sWO}:{sWO+3}], s49 offen lds")
    C.vadd(("u", u))

def d_hload(C, i):
    A = C.A
    if i < 20:
        if i % 4 == 0: A(f"s_add_u32 s{S_HS}, s{S_HB}, {1024*i}")
        A(f"buffer_load_dwordx4 {v(HR(i),4)}, v{V_L16}, {WS}, s{S_HS} offen offset:{1024*(i%4)} {SC}")
    else:
        A(f"s_cmp_eq_u32 s{S_KQ}, 3\ns_cselect_b32 s48, 19, {i}\ns_lshl_b32 s48, s48, 10\ns_add_u32 s48, s48, s{S_HB}")
        A(f"buffer_load_dwordx4 {v(HR(i),4)}, v{V_L16}, {WS}, s48 offen {SC}")
    C.vadd(("h", i))

def phase_c(C, qop):
    A = C.A
    A(f"""v_mov_b32 v{V_IDX}, 0xdddddddd
    s_mul_i32 s48, s{S_W}, {OXW}
    s_add_u32 s48, s48, {OX0}
    v_add_u32 v{V_W16}, s48, v{V_L16}
    v_lshl_add_u32 v{V_W4}, v1, 2, s48
    s_sub_u32 s48, s{S_W}, 2
    s_and_b32 s48, s48, 7
    s_mul_i32 s48, s48, {OXW}
    s_add_u32 s48, s48, {OX0}
    v_add_u32 v{V_R16}, s48, v{V_L16}
    v_lshl_add_u32 v{V_R4}, v1, 2, s48""")
    def qk(n):
        t, i = divmod(n, 8)
        if t == 0: C.vwait([("k", i), ("q", 0)])
        elif i == 0: C.vwait(("q", t))
        A(f"v_mfma_f32_32x32x16_bf16 {v(SR(n%2),16)}, {v(KR(i),4)}, {v(QR(t%2),4)}, 0")
    def sm(n, j):
        t, i = divmod(n, 8)
        if t == 0: C.vwait(("v", i, j))
        if i == 0 and j == 0 and t >= 2: C.lwait(("ox", t))
        A(f"v_smfmac_f32_32x32x32_bf16 {v(OR_(t%2),16)}, {v(VR(i,j),4)}, {v(SR(n%2)+8*j,8)}, v{V_IDX}")
    def oxw(t, k):
        o = OR_((t - 1) % 2); off = OXO(t)
        if k < 2: A(f"ds_write_b128 v{V_W16}, {v(o+4*k,4)} offset:{off+1024*k}")
        else: A(f"ds_write_b32 v{V_W4}, v{o+8} offset:{off+2048}")
        C.lg.add("oxw")
    def oxr(t, k):
        o = OR_((t + 1) % 2); off = OXO(t)
        if k < 2: A(f"ds_read_b128 {v(o+4*k,4)}, v{V_R16} offset:{off+1024*k}")
        else: A(f"ds_read_b32 v{o+8}, v{V_R4} offset:{off+2048}")
        C.lg.add(("ox", t + 1))
    ext = {}
    def at(t, i, f): ext.setdefault((t, i), []).append(f)
    def dw_addr():
        A(f"""v_lshrrev_b32 v8, 3, v1
        v_bfe_u32 v9, v1, 4, 1
        v_lshlrev_b32 v9, 2, v9
        v_and_b32 v10, 7, v1
        v_xor_b32 v9, v9, v10
        v_lshlrev_b32 v9, 4, v9
        v_lshl_add_u32 v9, v8, 10, v9
        s_mul_i32 s48, s{S_KQ}, 352
        s_lshl_b32 s49, s{S_RD}, 3
        s_add_u32 s48, s48, s49
        s_lshl_b32 s48, s48, 10
        s_lshl_b32 s49, s{S_C64}, 7
        s_add_u32 s48, s48, s49
        v_add_u32 v{V_DW}, s48, v9
        s_mul_i32 s48, s{S_KQ}, 11
        s_mul_i32 s48, s48, 171
        s_lshr_b32 s48, s48, 9
        s_lshr_b32 s49, s{S_R64}, 1
        s_lshl_b32 s49, s49, 4
        s_add_u32 s48, s48, s49
        s_add_u32 s48, s48, {F2 >> 8}
        v_add_lshl_u32 v8, v1, s48, 8""")
    at(0, 6, dw_addr)
    pos = [(t, i) for t in range(1, 8) for i in range(8) if (t, i) >= (1, 5)]
    for u in range(15): at(*pos[u], lambda u=u: d_unit(C, u))
    at(2, 6, lambda: poll_issue(C, 9, 8, 0x1f))
    at(3, 4, lambda: poll_check(C, 9, 8, 0x1f))
    hp = [p for p in pos if p >= (3, 5)]
    for i in range(20): at(*hp[i], lambda i=i: d_hload(C, i))
    def r1():
        A(f"""s_sub_u32 s48, s{S_W}, 1
        s_and_b32 s48, s48, 7
        s_mul_i32 s48, s48, {OXW}
        s_add_u32 s48, s48, {OX0}
        v_add_u32 v{V_R16}, s48, v{V_L16}
        v_lshl_add_u32 v{V_R4}, v1, 2, s48""")
    at(7, 2, r1)
    qk(0)
    for p in range(2):
        for r in range(9): A(f"v_mov_b32 v{OR_(p)+r}, 0")
    C.stamp()
    for n in range(64):
        t, i = divmod(n, 8)
        sb = SR(n % 2)
        e = lambda k: A(f"v_exp_f32 v{sb+k}, v{sb+k}")
        e(0); e(1)
        if n > 0: sm(n - 1, 1)
        e(2); e(3); e(4)
        if n < 63: qk(n + 1)
        e(5); e(6)
        if t >= 1 and 1 <= i <= 3: oxw(t, i - 1)
        if t >= 1 and 5 <= i <= 7: oxr(t, i - 5)
        if i == 0 and 1 <= t <= 6: qop(t + 1)()
        e(7); e(8); e(9)
        sm(n, 0)
        e(10); e(11)
        if t >= 1 and i == 4:
            C.lwait("oxw")
            if t == 1: C.vwait("stB")
            A("s_barrier")
            if t == 1:
                A(f"s_lshl_b32 s48, s{S_RB}, 4\ns_add_u32 s48, s48, s{S_CB}\ns_lshl_b32 s48, s48, 8\ns_add_u32 s51, s48, {F2}")
                signal(A, "s51")
        for f in ext.get((t, i), []): f()
        if i == 3 and t in (1, 4): C.stamp()
        for k in range(12, 16): e(k)
    A("s_nop 1")
    sm(63, 1)
    C.lwait0()
    C.stamp()
    A(f"s_mov_b32 s50, {f2u(2.0**-64):#x}\ns_mov_b32 s51, {f2u(2.0**64):#x}\ns_nop 8")
    o1, o0 = OR_(1), OR_(0)
    for r in (8, 0, 1, 2, 3, 4, 5, 6, 7): A(f"v_add_f32 v{o1+r}, v{o1+r}, v{o0+r}")
    lslow, lfin = A.label("slow"), A.label("fin")
    A(f"""v_cmp_lt_f32 s[52:53], s50, v{o1+8}
    v_cmp_gt_f32 vcc, s51, v{o1+8}
    s_nop 3
    s_and_b64 vcc, vcc, s[52:53]
    s_cmp_eq_u64 vcc, -1
    s_cbranch_scc0 {lslow}
    {lfin}:
    v_rcp_f32 v{o1+8}, v{o1+8}
    s_nop 0""")
    for q in range(4): A(f"v_pk_mul_f32 {v(o1+2*q,2)}, {v(o1+2*q,2)}, {v(o1+8,2)} op_sel_hi:[1,0]")
    for q in range(4): A(f"v_cvt_pk_bf16_f32 v{o0+q}, v{o1+2*q}, v{o1+2*q+1}")
    A(f"buffer_store_dwordx4 {v(o0,4)}, v{V_L16}, {WS}, s{S_OST} offen {SC}"); C.vadd("stO")
    return lslow, lfin

def phase_c_slow(A, lslow, lfin):
    o1, o0, S, q = OR_(1), OR_(0), SR(0), QR(1)
    l1, l2 = A.label("p1"), A.label("p2")
    A(f"""{lslow}:
    s_waitcnt vmcnt(0)
    s_lshl_b32 s48, s{S_HD}, 16
    s_add_u32 s54, s48, {KF}
    s_add_u32 s55, s48, {VF}
    s_mov_b32 s50, 0
    v_and_b32 v{V_R4}, 15, v1
    v_lshlrev_b32 v{V_R4}, 4, v{V_R4}
    v_lshrrev_b32 v7, 5, v1
    v_lshl_add_u32 v{V_R4}, v7, 8, v{V_R4}
    v_mov_b32 v7, 0xff7fffff
    {l1}:
    s_add_u32 s48, s54, s50
    buffer_load_dwordx4 {v(KR(0),4)}, v{V_L16}, {WS}, s48 offen {SC}
    s_waitcnt vmcnt(0)
    v_mfma_f32_32x32x16_bf16 {v(S,16)}, {v(KR(0),4)}, {v(q,4)}, 0
    s_nop 15""")
    for r in range(8): A(f"v_max3_f32 v7, v7, v{S+2*r}, v{S+2*r+1}")
    A(f"""s_add_u32 s50, s50, 1024
    s_cmp_lt_u32 s50, 0x10000
    s_cbranch_scc1 {l1}
    v_mov_b32 v{o0}, v7
    s_nop 1
    v_permlane32_swap_b32 v7, v{o0}
    s_nop 1
    v_max_f32 v7, v7, v{o0}""")
    for r in range(16): A(f"v_sub_f32 v{o0+r}, 0, v7\nv_mov_b32 v{o1+r}, 0")
    A(f"""s_mov_b32 s50, 0
    {l2}:
    s_add_u32 s48, s54, s50
    s_add_u32 s49, s55, s50
    buffer_load_dwordx4 {v(KR(0),4)}, v{V_L16}, {WS}, s48 offen {SC}
    s_mov_b32 exec_lo, 0xffff
    s_mov_b32 exec_hi, 0xffff
    buffer_load_dwordx4 {v(VR(0,0),4)}, v{V_R4}, {WS}, s49 offen {SC}
    buffer_load_dwordx4 {v(VR(0,1),4)}, v{V_R4}, {WS}, s49 offen offset:512 {SC}
    s_mov_b64 exec, -1
    s_waitcnt vmcnt(0)
    v_mfma_f32_32x32x16_bf16 {v(S,16)}, {v(KR(0),4)}, {v(q,4)}, {v(o0,16)}
    s_nop 15""")
    for r in range(16): A(f"v_exp_f32 v{S+r}, v{S+r}")
    A(f"""s_nop 1
    v_smfmac_f32_32x32x32_bf16 {v(o1,16)}, {v(VR(0,0),4)}, {v(S,8)}, v{V_IDX}
    v_smfmac_f32_32x32x32_bf16 {v(o1,16)}, {v(VR(0,1),4)}, {v(S+8,8)}, v{V_IDX}
    s_nop 15
    s_add_u32 s50, s50, 1024
    s_cmp_lt_u32 s50, 0x10000
    s_cbranch_scc1 {l2}
    s_branch {lfin}""")

WB = lambda s: 32 + 8 * (s % 3)
AF = lambda ct: 64 + 16 * ct
WOR = lambda q: 128 + 4 * q
OB = lambda p: 200 + 4 * p
AS = 216
V_TR, V_TW, V_DWO, V_XO, V_FIN, V_T, V_PA, V_PF, V_X = 56, 58, 5, 6, 7, 3, 59, 60, 224
FXS = 17408
OREG = 11 * 8192

def phase_d(C):
    A = C.A
    for i in (20, 21): d_hload(C, i)
    A(f"""s_mul_i32 s48, s{S_KQ}, 352
    s_lshl_b32 s49, s{S_RD}, 3
    s_add_u32 s48, s48, s49
    s_lshl_b32 s49, s{S_W}, 3
    s_sub_u32 s48, s49, s48
    s_lshl_b32 s48, s48, 10
    v_add_u32 v{V_DWO}, s48, v{V_DW}
    v_lshrrev_b32 v61, 3, v1
    v_add_u32 v61, s49, v61
    v_and_b32 v62, 7, v1
    s_lshl_b32 s48, s{S_R64}, 16
    s_lshl_b32 s49, s{S_C64}, 7
    s_add_u32 s48, s48, s49
    v_lshlrev_b32 v{V_XO}, 10, v61
    v_lshlrev_b32 v63, 4, v62
    v_add3_u32 v{V_XO}, v{V_XO}, v63, s48
    buffer_load_dwordx4 {v(V_X,4)}, v{V_XO}, s[{sX}:{sX+3}], 0 offen""")
    C.vadd("x")
    A(f"""s_movk_i32 s48, 272
    v_mul_u32_u24 v{V_FIN}, s48, v61
    v_lshl_add_u32 v{V_FIN}, v62, 5, v{V_FIN}
    v_lshrrev_b32 v61, 5, v1
    v_bfe_u32 v62, v1, 2, 2
    v_lshl_add_u32 v62, v61, 2, v62
    v_lshlrev_b32 v{V_TW}, 7, v62
    v_bfe_u32 v62, v1, 3, 1
    v_lshl_add_u32 v{V_TW}, v62, 6, v{V_TW}
    v_bfe_u32 v62, v1, 4, 1
    v_lshl_add_u32 v{V_TW}, v62, 5, v{V_TW}
    v_and_b32 v62, 3, v1
    v_lshl_add_u32 v{V_TW}, v62, 3, v{V_TW}
    s_lshl_b32 s49, s{S_KQ}, 11
    v_add_u32 v{V_TR}, s49, v{V_TW}
    v_xor_b32 v{V_TR+1}, 64, v{V_TR}
    v_and_b32 v62, 31, v1
    s_lshl_b32 s49, s{S_RD}, 5
    v_add_u32 v62, s49, v62
    v_mul_u32_u24 v{V_T}, s48, v62
    v_lshl_add_u32 v{V_T}, v61, 4, v{V_T}""")
    C.vwait([("u", u) for u in range(15)] + [("h", i) for i in range(20)])
    A("s_barrier")
    C.stamp()
    win = [0]
    def rd(i, ct):
        b = WB(i) + 4 * ct; w = USLOT(i) // 65536
        if ct == 0 and w != win[0]:
            d = (w - win[0]) * 65536
            A(f"v_add_u32 v{V_TR}, {d & 0xffffffff:#x}, v{V_TR}\nv_add_u32 v{V_TR+1}, {d & 0xffffffff:#x}, v{V_TR+1}")
            win[0] = w
        for u in range(2):
            A(f"ds_read_b64_tr_b16 {v(b+2*u,2)}, v{V_TR+ct} offset:{USLOT(i)-65536*w+1024*u}"); C.lg.add(("w", i))
    for i in range(2):
        for ct in range(2): rd(i, ct)
    pend = [lambda u=u: d_unit(C, u, V_DWO) for u in range(15, 19)]
    o_ops = []
    for i in range(22):
        if i == 4:
            A("s_barrier"); pend += [lambda u=u: d_unit(C, u, V_DWO) for u in range(19, 23)]
        if i == 12:
            C.vwait([("u", u) for u in range(15, 22)] + [("h", 20), ("h", 21)])
            A("s_barrier"); pend += [lambda u=u: d_unit(C, u, V_DWO) for u in range(23, 30)]
        if i == int(OPT.get("f3", 6)):
            C.vwait("stO")
            A(f"""s_mov_b64 exec, 1
            v_mov_b32 v61, s{S_NON}
            buffer_store_dword v61, off, {WS}, s{S_F3} {SC}
            s_mov_b64 exec, -1""")
            C.vadd("flag")
        if i == 10:
            A(f"""s_lshl_b32 s48, s{S_R64}, 1
            s_add_u32 s48, s48, s{S_RD}
            s_lshl_b32 s48, s48, 5
            s_bfe_u32 s51, s{S_W}, 0x10001
            s_lshl_b32 s50, s51, 4
            s_lshr_b32 s47, s{S_W}, 2
            s_add_u32 s50, s50, s47
            s_add_u32 s52, s48, s50
            v_lshl_add_u32 v{V_PA}, v1, 1, s52
            v_lshlrev_b32 v{V_PA}, 7, v{V_PA}
            v_add_u32 v{V_PA}, {F3:#x}, v{V_PA}
            s_lshl_b32 s52, s52, 10
            s_add_u32 s52, s52, {OF}
            s_lshl_b32 s48, s{S_RD}, 5
            s_add_u32 s53, s48, s50
            s_lshl_b32 s53, s53, 10
            s_add_u32 s53, s53, {OREG}""")
        if i == 19:
            poll_check(C, V_PF, V_PA, 0xff)
            A("s_barrier")
            def oop(q):
                A(f"s_add_u32 m0, s53, {2048*q}\ns_add_u32 s48, s52, {2048*q}")
                A(f"buffer_load_dwordx4 v{V_L16}, {WS}, s48 offen {SC} lds"); C.vadd(("o", q))
            pend += [lambda q=q: oop(q) for q in range(8)]
        C.lwait(("w", i))
        for ct in range(2):
            A(f"v_mfma_f32_32x32x16_bf16 {v(AF(ct),16)}, {v(WB(i)+4*ct,4)}, {v(HR(i),4)}, {'0' if i == 0 else v(AF(ct),16)}")
            if i + 2 < 22: rd(i + 2, ct)
            if pend: pend.pop(0)()
        if i == 16: poll_issue(C, V_PF, V_PA, 0xff)
    C.stamp()
    while pend: pend.pop(0)()
    A.c("wo fragments into registers; wave = (tile, k half)")
    C.vwait([("u", u) for u in range(22, 30)])
    A(f"""s_barrier
    s_lshl_b32 s48, s51, 6
    v_xor_b32 v{V_TW}, s48, v{V_TW}
    s_mul_i32 s48, s47, {4*8192}
    s_add_u32 s48, s48, {USLOT(22)}
    v_add_u32 v{V_TW}, s48, v{V_TW}""")
    for q in range(16):
        for u in range(2): A(f"ds_read_b64_tr_b16 {v(WOR(q)+2*u,2)}, v{V_TW} offset:{2048*q+1024*u}")
        if q % 4 == 3: A("s_waitcnt lgkmcnt(4)")
    A(f"s_mul_i32 s48, s{S_KQ}, {FXS}\nv_add_u32 v61, s48, v{V_T}")
    C.lwait0()
    A("s_barrier")
    for ct in range(2):
        for j in range(4): A(f"ds_write_b128 v61, {v(AF(ct)+4*j,4)} offset:{128*ct+32*j}")
    C.lwait0()
    A("s_barrier")
    F = 64
    for kq in range(4):
        for hh in range(2): A(f"ds_read_b128 {v(F+8*kq+4*hh,4)}, v{V_FIN} offset:{FXS*kq+16*hh}")
    C.lwait0()
    for q in range(4):
        A(f"v_pk_add_f32 {v(F+2*q,2)}, {v(F+2*q,2)}, {v(F+8+2*q,2)}\nv_pk_add_f32 {v(F+16+2*q,2)}, {v(F+16+2*q,2)}, {v(F+24+2*q,2)}")
    for q in range(4): A(f"v_pk_add_f32 {v(F+2*q,2)}, {v(F+2*q,2)}, {v(F+16+2*q,2)}")
    for q in range(8): A(f"v_mul_f32 v{F+8+q}, {f2u(-LOG2E):#x}, v{F+q}")
    for q in range(8): A(f"v_exp_f32 v{F+8+q}, v{F+8+q}")
    for q in range(8): A(f"v_add_f32 v{F+8+q}, 1.0, v{F+8+q}")
    for q in range(8): A(f"v_rcp_f32 v{F+8+q}, v{F+8+q}")
    A(f"""s_lshl_b32 s48, s{S_RD}, 1
    s_add_u32 s48, s48, s47
    s_lshl_b32 s48, s48, 14
    s_add_u32 s48, s48, {OREG}
    v_add_u32 v61, s48, v{V_L16}""")
    for q in range(8): A(f"v_mul_f32 v{F+q}, v{F+q}, v{F+8+q}")
    for q in range(4):
        A(f"v_lshlrev_b32 v{F+8+2*q}, 16, v{V_X+q}\nv_and_b32 v{F+9+2*q}, 0xffff0000, v{V_X+q}")
    C.stamp()
    C.vwait([("o", q) for q in range(8)])
    A("s_barrier")
    for q in range(4):
        A(f"ds_read_b128 {v(OB(q),4)}, v61 offset:{1024*q}"); C.lg.add(("o", q))
    l = A.label("ep")
    A(f"""s_add_u32 s48, s2, s{S_W}
    s_cmp_lg_u32 s48, 0
    s_cbranch_scc1 {l}
    s_mov_b64 exec, 1
    v_mov_b32 v62, s{S_NON}
    s_mov_b32 s48, {EPO}
    buffer_store_dword v62, off, {WS}, s48 {SC}
    s_mov_b64 exec, -1
    {l}:""")
    for q in range(16):
        C.lwait(("o", q))
        A(f"v_mfma_f32_32x32x16_bf16 {v(AS,16)}, {v(WOR(q),4)}, {v(OB(q%4),4)}, {'0' if q == 0 else v(AS,16)}")
        if q + 4 < 16:
            A(f"ds_read_b128 {v(OB(q%4),4)}, v61 offset:{1024*(q+4)}"); C.lg.add(("o", q + 4))
    A(f"""s_mul_i32 s48, s47, {FXS}
    s_lshl_b32 s49, s51, 7
    s_add_u32 s48, s48, s49
    v_add_u32 v61, s48, v{V_T}
    s_nop 8""")
    for j in range(4): A(f"ds_write_b128 v61, {v(AS+4*j,4)} offset:{32*j}")
    C.lwait0()
    A("s_barrier")
    G = 80
    for kh in range(2):
        for hh in range(2): A(f"ds_read_b128 {v(G+8*kh+4*hh,4)}, v{V_FIN} offset:{FXS*kh+16*hh}")
    C.lwait0()
    for q in range(4): A(f"v_pk_add_f32 {v(G+2*q,2)}, {v(G+2*q,2)}, {v(G+8+2*q,2)}")
    for q in range(4): A(f"v_pk_fma_f32 {v(G+2*q,2)}, {v(G+2*q,2)}, {v(F+2*q,2)}, {v(F+8+2*q,2)}")
    for q in range(4): A(f"v_cvt_pk_bf16_f32 v{G+8+q}, v{G+2*q}, v{G+2*q+1}")
    A(f"buffer_store_dwordx4 {v(G+8,4)}, v{V_XO}, s[{sOUT}:{sOUT+3}], 0 offen")

def build():
    NAME = "recurrent_scan__mha_block__swiglu_ffn__prompt"
    K = NAME + "_kernel"
    hdr = open("cdna_kernels/%s.s.ref" % NAME).read().split("; Override")[0]
    out = hdr + "; @launch grid=(256,1,1) block=(512,1,1) lds=163840\n"
    out += '.amdgcn_target "amdgcn-amd-amdhsa--gfx950"\n.text\n'
    A = Asm(); C = Ctx(A)
    A(f".globl {K}\n.p2align 8\n.type {K},@function\n{K}:")
    A("s_cmp_ge_u32 s2, 256\ns_cbranch_scc1 L_end")
    A(f"s_load_dwordx16 s[{PTR}:{PTR+15}], s[0:1], 0\ns_load_dwordx4 s[{PTR+16}:{PTR+19}], s[0:1], 64")
    setup0(A)
    A("s_waitcnt lgkmcnt(0)")
    srd(A, sX, PTR + 0, 2048 * 512 * 2)
    srd(A, sWQ, PTR + 2, 512 * 1536 * 2)
    C.stamp(True); C.stamp()
    for f in dma_ops(C, 0): f()
    A(f"s_add_u32 s4, s{PTR+18}, {EPO}\ns_addc_u32 s5, s{PTR+19}, 0\ns_load_dword s{S_NON}, s[4:5], 0")
    for f in dma_ops(C, 1): f()
    setup1(A)
    for f in dma_ops(C, 2): f()
    setup2(A)
    A(f"s_waitcnt lgkmcnt(0)\ns_mul_i32 s{S_NON}, s{S_NON}, 0x9e3779b1\ns_add_u32 s{S_NON}, s{S_NON}, 0x7f4a7c15")
    l1, lm = A.label("a1"), A.label("am")
    A(f"s_cmp_lg_u32 s{S_CH}, 0\ns_cbranch_scc1 {l1}")
    base = C.vm[0]
    C.vm = [base.copy()]
    path_a(C, 0)
    vm0, lg0 = C.vm[0], C.lg
    A(f"s_branch {lm}\n{l1}:")
    C.vm = [base.copy()]; C.lg = Cnt(15)
    pend = path_a(C, 1)
    assert lg0.q == C.lg.q, (lg0.q, C.lg.q)
    A(f"{lm}:")
    C.vm = [vm0, C.vm[0]]
    qop = phase_b(C, pend)
    ls, lf = phase_c(C, qop)
    phase_d(C)
    if C.prof:
        C.stamp(); C.stamp(True); C.dump()
    A("s_endpgm")
    phase_c_slow(A, ls, lf)
    A("L_end:\ns_endpgm")
    out += A.text() + '.section .rodata,"a"\n.p2align 6\n' + kdesc(K)
    dst = sys.argv[1] if len(sys.argv) > 1 else "cdna_kernels/%s.s" % NAME
    open(dst, "w").write(out)
    print("wrote", dst, len(out), "bytes; stamps", C.nst)

if __name__ == "__main__":
    build()
```

```python
import struct, os, sys
from asmlib import *

QF, KF, VF, OF, HF = 0x000000, 0x200000, 0x400000, 0x600000, 0x800000
F1, F2, F3, EPO = 0xE00000, 0xE10000, 0xE20000, 0xE70000
WS_BYTES = 0x1000000
def f2u(x): return struct.unpack("<I", struct.pack("<f", x))[0]
LOG2E = 1.4426950408889634
OPT = dict(kv.split("=") for kv in os.environ.get("OPT", "").split(",") if kv)

sX, sWQ, sWG, sWS, sWD, sWO, sOUT = 8, 12, 16, 20, 24, 28, 32
S_NON, S_W, S_RT, S_CH, S_ONES, S_XCD, S_I = 3, 36, 37, 38, 39, 40, 41
S_RB, S_CB, S_K2048 = 42, 43, 44
S_HD, S_QB, S_KB, S_VB, S_R64, S_C64 = 56, 57, 58, 60, 62, 63
S_QO, S_KQ, S_RD, S_HB, S_OST, S_F3, S_US, S_HS, S_CNT = 64, 72, 73, 74, 75, 76, 77, 78, 79
S_K1024, S_K3072, S_W2048, S_W1024, S_W512, S_BM = 84, 88, 92, 93, 94, 95
PTR = 64
WS = f"s[{sWS}:{sWS+3}]"
SC = "sc1"

class Cnt:
    def __init__(self, mx): self.q, self.mx = [], mx
    def add(self, tag): self.q.append(tag)
    def need(self, tags):
        if not isinstance(tags, list): tags = [tags]
        last = max([i for i, t in enumerate(self.q) if t in tags], default=-1)
        return min(len(self.q) - 1 - last, self.mx), last >= 0
    def copy(self):
        c = Cnt(self.mx); c.q = list(self.q); return c

class Ctx:
    STR = [96, 97, 100, 101, 80, 81, 82, 83, 0, 1, 6, 7, 84, 85, 86, 87]
    prof = bool(os.environ.get("PROF"))
    def __init__(self, A):
        self.A = A; self.vm = [Cnt(63)]; self.lg = Cnt(15); self.nst = 0
    def vadd(self, tag):
        for c in self.vm: c.add(tag)
    def vwait(self, tags):
        r = [c.need(tags) for c in self.vm]
        assert all(x[1] for x in r), tags
        self.A(f"s_waitcnt vmcnt({min(x[0] for x in r)})")
    def lwait(self, tags):
        n, found = self.lg.need(tags)
        if found:
            self.A(f"s_waitcnt lgkmcnt({n})")
            self.lg.q = self.lg.q[len(self.lg.q) - n:] if n else []
    def lwait0(self):
        self.A("s_waitcnt lgkmcnt(0)"); self.lg.q = []
    def stamp(self, real=False):
        if not self.prof: return
        k = self.nst; self.nst += 1
        real = real or os.environ.get("PROF") == "rt"
        self.A(f"{'s_memrealtime' if real else 's_memtime'} s[98:99]\ns_waitcnt lgkmcnt(0)\ns_mov_b32 s{self.STR[k]}, s98")
    def dump(self):
        if not self.prof: return
        A = self.A
        if os.environ.get("PROF") == "rt":
            l = A.label("dbg")
            A(f"s_cmp_lg_u32 s{S_W}, 0\ns_cbranch_scc1 {l}\ns_mov_b64 exec, 1\ns_not_b32 s{self.STR[0]}, s{self.STR[0]}")
            for k in range(self.nst):
                A(f"v_mov_b32 v1, s{self.STR[k]}\nbuffer_atomic_umax v1, off, s[44:47], 0 offset:{4*k}")
            A(f"{l}:")
            return
        A(f"s_lshl_b32 s98, s2, 3\ns_add_u32 s98, s98, s{S_W}\ns_lshl_b32 s98, s98, 6\ns_add_u32 s98, s98, 0xF00000")
        A("v_mov_b32 v0, 0\ns_mov_b64 exec, 1")
        for k in range(self.nst):
            A(f"v_mov_b32 v1, s{self.STR[k]}\nbuffer_store_dword v1, v0, {WS}, s98 offen offset:{4*k}")
        A("s_mov_b64 exec, -1")

def signal(A, soff):
    l = A.label("sig")
    A(f"""s_cmp_lg_u32 s{S_W}, 0
    s_cbranch_scc1 {l}
    s_mov_b64 s[4:5], exec
    s_mov_b64 exec, 1
    v_mov_b32 v16, s{S_NON}
    buffer_store_dword v16, off, {WS}, {soff} {SC}
    s_mov_b64 exec, s[4:5]
    {l}:""")

def poll_issue(C, vf, va, mask):
    C.A(f"s_mov_b64 exec, {mask:#x}\nbuffer_load_dword v{vf}, v{va}, {WS}, 0 offen {SC}\ns_mov_b64 exec, -1")
    C.vadd("poll")

def poll_check(C, vf, va, mask):
    A = C.A; lo, lp = A.label("pok"), A.label("psp")
    C.vwait("poll")
    for c in C.vm: c.q = ["old" if t == "poll" else t for t in c.q]
    A(f"""s_mov_b64 exec, {mask:#x}
    v_cmp_ne_u32 vcc, s{S_NON}, v{vf}
    s_mov_b32 s{S_CNT}, 40000
    s_cbranch_vccz {lo}
    {lp}:
    s_sleep 1
    buffer_load_dword v{vf}, v{va}, {WS}, 0 offen {SC}
    s_sub_u32 s{S_CNT}, s{S_CNT}, 1
    s_waitcnt vmcnt(0)
    v_cmp_ne_u32 vcc, s{S_NON}, v{vf}
    s_cmp_eq_u32 s{S_CNT}, 0
    s_cbranch_scc1 {lo}
    s_cbranch_vccnz {lp}
    {lo}:
    s_mov_b64 exec, -1""")

SLOT = 28672
STA = 5 * SLOT
CSX = 157696
XR = 128
BUF = lambda s: 32 + 12 * (s % 3)
ACC = lambda j: 68 + 16 * j
SEL = 116
CS = lambda t: 120 + 4 * t
def CSR(t): return 120 + 4 * t if t < 2 else 28
RS = 24
V_MU, V_R = 19, 20

def setup0(A):
    A(f"""v_lshrrev_b32 v1, 6, v0
    s_and_b32 s{S_XCD}, s2, 7
    s_lshr_b32 s{S_I}, s2, 3
    v_readfirstlane_b32 s{S_W}, v1
    v_and_b32 v1, 63, v0
    s_and_b32 s48, s{S_XCD}, 1
    s_lshl_b32 s48, s48, 3
    s_and_b32 s49, s{S_I}, 7
    s_add_u32 s{S_RB}, s48, s49
    s_lshr_b32 s48, s{S_XCD}, 1
    s_lshl_b32 s48, s48, 2
    s_lshr_b32 s49, s{S_I}, 3
    s_add_u32 s{S_CB}, s48, s49
    s_lshl_b32 s{S_W2048}, s{S_W}, 11
    s_lshl_b32 s{S_W1024}, s{S_W}, 10
    s_lshl_b32 s{S_W512}, s{S_W}, 9
    v_lshrrev_b32 v26, 3, v1
    v_lshrrev_b32 v27, 4, v1
    v_and_b32 v28, 7, v1
    v_xor_b32 v29, v28, v27
    v_lshlrev_b32 v29, 4, v29
    s_lshl_b32 s48, s{S_RB}, 7
    s_lshl_b32 s49, s{S_W}, 4
    s_add_u32 s48, s48, s49
    v_add_u32 v2, s48, v26
    v_lshl_add_u32 v2, v2, 10, v29
    v_xor_b32 v3, 64, v2
    v_add_u32 v3, 0x2000, v3
    s_lshr_b32 s50, s{S_CB}, 1
    s_and_b32 s51, s{S_CB}, 1
    s_lshl_b32 s48, s51, 10
    s_lshl_b32 s49, s50, 7
    s_add_u32 s52, s48, s49
    s_lshl_b32 s48, s51, 6
    s_add_u32 s53, s48, s49
    s_add_u32 s53, s53, 2048
    s_lshl_b32 s54, s{S_W}, 3
    s_movk_i32 s55, 3072
    v_and_b32 v27, 1, v27
    v_lshlrev_b32 v27, 2, v27
    v_xor_b32 v27, v27, v28
    v_lshlrev_b32 v27, 4, v27
    v_add_u32 v4, s54, v26
    v_mul_u32_u24 v4, s55, v4
    v_add3_u32 v4, v4, v27, s52
    v_bfe_u32 v5, v1, 2, 3
    v_add_u32 v5, s54, v5
    v_mul_u32_u24 v5, s55, v5
    v_and_b32 v27, 3, v1
    v_lshlrev_b32 v27, 4, v27
    v_add3_u32 v5, v5, v27, s53""")

def setup1(A):
    A(f"s_and_b32 s{S_RT}, s{S_W}, 3\ns_lshr_b32 s{S_CH}, s{S_W}, 2\ns_mov_b32 s{S_ONES}, 0x3f803f80")
    srd(A, sWS, PTR + 18, WS_BYTES)
    srd(A, sWD, PTR + 12, 1376 * 512 * 2)
    srd(A, sWO, PTR + 4, 512 * 512 * 2)
    srd(A, sOUT, PTR + 14, 2048 * 512 * 2)
    A(f"s_cmp_eq_u32 s{S_CH}, 0")
    A(f"s_cselect_b32 s{sWG}, s{PTR+8}, s{PTR+10}\ns_cselect_b32 s{sWG+1}, s{PTR+9}, s{PTR+11}")
    A(f"s_and_b32 s{sWG+1}, s{sWG+1}, 0xffff\ns_mov_b32 s{sWG+2}, {512*1376*2:#x}\ns_mov_b32 s{sWG+3}, 0x00020000")
    for j in range(4):
        A(f"""s_xor_b32 s48, s{S_RT}, {j}
        s_lshl_b32 s{S_K2048+j}, s48, 11
        s_lshl_b32 s{S_K1024+j}, s48, 10
        s_mul_i32 s{S_K3072+j}, s48, 3072""")
    A.c("LDS read addresses: v9..v12 x, v13/v14 wqkv, v15 gate/up; selector operand")
    A(f"""v_and_b32 v26, 31, v1
    v_lshrrev_b32 v27, 5, v1
    v_bfe_u32 v28, v1, 1, 3
    v_xor_b32 v28, v28, v27
    s_lshl_b32 s48, s{S_RT}, 1
    v_xor_b32 v28, s48, v28
    v_lshlrev_b32 v28, 4, v28
    s_lshl_b32 s48, s{S_RT}, 12
    v_lshlrev_b32 v26, 7, v26
    v_add3_u32 v9, v26, v28, s48
    v_xor_b32 v10, 32, v9
    v_xor_b32 v11, 64, v9
    v_xor_b32 v12, 0x60, v9
    v_bfe_u32 v26, v1, 2, 2
    v_lshl_add_u32 v26, v27, 3, v26
    v_bfe_u32 v28, v1, 4, 1
    v_and_b32 v29, 3, v1
    v_lshlrev_b32 v29, 3, v29
    v_lshl_add_u32 v30, v28, 5, v29
    v_bfe_u32 v31, v1, 3, 1
    v_lshlrev_b32 v31, 6, v31
    v_lshlrev_b32 v13, 7, v26
    v_add3_u32 v13, v13, v30, v31
    v_add_u32 v13, 0x4000, v13
    v_xor_b32 v14, 64, v13
    v_lshl_add_u32 v31, v26, 6, v30
    v_add_u32 v31, 0x6000, v31
    s_movk_i32 s48, 192
    v_mul_u32_u24 v15, s48, v26
    s_movk_i32 s48, 12320
    v_mul_u32_u24 v26, s48, v28
    v_add3_u32 v15, v15, v26, v29
    s_mul_i32 s48, s{S_CH}, 96
    v_add_u32 v15, s48, v15
    s_cmp_eq_u32 s{S_CH}, 0
    s_cselect_b64 vcc, -1, 0
    v_cndmask_b32 v13, v31, v13, vcc
    v_and_b32 v26, 7, v1
    v_cmp_eq_u32 vcc, v26, v28
    v_mov_b32 v27, s{S_ONES}
    v_mov_b32 v21, 0
    v_mov_b32 v22, 0
    v_cndmask_b32 v{SEL}, 0, v27, vcc
    v_cndmask_b32 v{SEL+1}, 0, v27, vcc
    v_cndmask_b32 v{SEL+2}, 0, v27, vcc
    v_cndmask_b32 v{SEL+3}, 0, v27, vcc""")

def setup2(A):
    A.c("gate/up DMA offsets v6..v8")
    A(f"""s_mul_i32 s48, s{S_CB}, 192
    s_mul_i32 s49, s{S_RT}, {16*2752}
    s_add_u32 s48, s48, s49
    s_movk_i32 s55, 2752""")
    for m in range(3):
        A(f"""v_add_u32 v26, {64*m}, v1
        v_mul_u32_u24 v27, 171, v26
        v_lshrrev_b32 v27, 11, v27
        v_mul_u32_u24 v28, 12, v27
        v_sub_u32 v26, v26, v28
        v_lshlrev_b32 v26, 4, v26
        v_mul_u32_u24 v27, s55, v27
        v_add3_u32 v{6+m}, v26, v27, s48""")
    A(f"""s_mul_i32 s{S_BM}, s{S_CH}, 12320
    s_mul_i32 s48, s{S_RT}, 3072
    s_add_u32 s{S_BM}, s{S_BM}, s48""")

def dma_ops(C, c):
    A = C.A; slot = (c % 5) * SLOT; tag = ("c", c)
    def op(m0s, m0o, soff, va, rs, half=False):
        def f():
            A(f"s_add_u32 m0, s{m0s}, {m0o}\ns_mov_b32 s49, {soff}")
            if half: A("s_mov_b32 exec_hi, 0")
            A(f"buffer_load_dwordx4 v{va}, s[{rs}:{rs+3}], s49 offen lds"); C.vadd(tag)
            if half: A("s_mov_b32 exec_hi, -1")
        return f
    if c < 8:
        return [op(S_W2048, slot, 128 * c, 2, sX), op(S_W2048, slot + 1024, 128 * c, 3, sX),
                op(S_W1024, slot + 16384, 196608 * c, 4, sWQ), op(S_W512, slot + 24576, 196608 * c, 5, sWQ, True)]
    if c < 16:
        return [op(S_BM, slot + 1024 * m, 176128 * (c - 8), 6 + m, sWG) for m in range(3)]
    return []

def xread(C, s):
    A = C.A; c, j = divmod(s, 4); slot = (c % 5) * SLOT
    if slot < 65536: A(f"ds_read_b128 {v(XR+4*s,4)}, v{9+j} offset:{slot}")
    else: A(f"v_add_u32 v18, {slot}, v{9+j}\nds_read_b128 {v(XR+4*s,4)}, v18")
    C.lg.add(("x", s))

def raddr(C, s, ch):
    A = C.A; c, j = divmod(s, 4); slot = (c % 5) * SLOT
    if s >= 32: A(f"s_add_u32 s48, s{S_K3072+j}, {slot}\nv_add_u32 v16, s48, v15")
    elif ch == 0: A(f"s_add_u32 s48, s{S_K2048+j}, {slot}\nv_add_u32 v16, s48, v13\nv_add_u32 v17, s48, v14")
    else: A(f"s_add_u32 s48, s{S_K1024+j}, {slot}\nv_add_u32 v16, s48, v13")

def wread(C, s, t, ch):
    A = C.A; b = BUF(s) + 4 * t
    for u in range(2):
        if s >= 32: a, o = 16, 768 * u + 32 * t
        elif ch == 0: a, o = 16 + t, 512 * u
        else: a, o = 16, 256 * u
        A(f"ds_read_b64_tr_b16 {v(b+2*u,2)}, v{a} offset:{o}"); C.lg.add(("w", s))

def ntile(s, ch): return 3 if s >= 32 else (2 if ch == 0 else 1)

def slot_ab(C, s, ch, extras):
    A = C.A; c, j = divmod(s, 4); n = s + 2
    x = XR + 4 * (s % 32); b = BUF(s); extras = list(extras)
    C.lwait([("w", s), ("x", s)])
    if n < 64: raddr(C, n, ch)
    xs = []
    if n < 30: xs = [n]
    if n in (28, 29): xs = [n, n + 2]
    nt = ntile(s, ch); nn = ntile(n, ch) if n < 64 else 0
    first = s in (0, 32)
    for t in range(max(nt, nn)):
        if t < nt:
            cop = "0" if first else v(ACC(t), 16)
            if s < 32 and ch == 1: A(f"v_mfma_f32_32x32x16_bf16 {v(ACC(0),16)}, {v(x,4)}, {v(b,4)}, {cop}")
            else: A(f"v_mfma_f32_32x32x16_bf16 {v(ACC(t),16)}, {v(b+4*t,4)}, {v(x,4)}, {cop}")
        if t == 0:
            for xx in xs: xread(C, xx)
        if t < nn: wread(C, n, t, ch)
        if extras: extras.pop(0)()
    lastc = c in (7, 15)
    cst = ([t for t in range(nt)] if j == 0 else []) if lastc else ([j] if j < nt else [])
    for t in cst:
        cz = "0" if c in (0, 8) else v(CSR(t), 4)
        A(f"v_mfma_f32_16x16x32_bf16 {v(CSR(t),4)}, {v(SEL,4)}, {v(b+4*t,4)}, {cz}")
    if s < 32 and ch == 1:
        st = [s] if s < 28 else ([s, s + 2] if s < 30 else [])
        for ss in st:
            xx = XR + 4 * ss
            if ss != s: C.lwait(("x", ss))
            A(f"v_mfma_f32_16x16x32_bf16 {v(RS,4)}, {v(SEL,4)}, {v(xx,4)}, {'0' if ss == 0 else v(RS,4)}")
            for q in range(4):
                A(f"""v_lshlrev_b32 v23, 16, v{xx+q}
                v_and_b32 v18, 0xffff0000, v{xx+q}
                v_fmac_f32 v21, v23, v23
                v_fmac_f32 v22, v18, v18""")
    for e in extras: e()

def top(C, c, more=()):
    C.vwait([("c", c)] + list(more))
    C.A("s_barrier")

def cs_write(C, tiles, tile0):
    A = C.A
    for t in tiles: A(f"v_permlane16_swap_b32 v{CSR(t)}, v{CSR(t)+1}")
    A(f"""v_and_b32 v23, 31, v1
    v_lshlrev_b32 v23, 4, v23
    s_lshl_b32 s48, s{S_RT}, 2
    s_add_u32 s48, s48, {tile0}
    v_add_u32 v18, s48, v23""")
    for k, t in enumerate(tiles):
        A(f"ds_write_b32 v18, v{CSR(t)} offset:{512*k}"); C.lg.add("csw")

def path_a(C, ch):
    A = C.A; n0 = C.nst
    top(C, 0)
    C.stamp()
    for s in (0, 1):
        raddr(C, s, ch); xread(C, s)
        for t in range(ntile(s, ch)): wread(C, s, t, ch)
    pend = dma_ops(C, 3)
    for s in range(32):
        if s % 4 == 2:
            c = (s + 2) // 4
            if c == 8:
                A("s_nop 4")
                cs_write(C, range(ntile(0, ch)), CSX + (0 if ch == 0 else 1024))
                A(f"""s_lshl_b32 s50, s{S_RT}, 8
                s_add_u32 s50, s50, {STA}
                v_and_b32 v17, 31, v1
                v_lshl_add_u32 v17, v17, 2, s50""")
                if ch == 1:
                    A(f"""v_add_f32 v21, v21, v22
                    v_permlane16_swap_b32 v{RS}, v{RS+1}
                    v_mov_b32 v22, v21
                    s_nop 1
                    v_permlane32_swap_b32 v21, v22
                    v_mul_f32 v{V_MU}, {f2u(-1.0/1024):#x}, v{RS}
                    v_add_f32 v21, v21, v22
                    v_mul_f32 v22, {f2u(1.0/512):#x}, v{RS}
                    v_mul_f32 v21, {f2u(1.0/512):#x}, v21
                    v_fma_f32 v21, -v22, v22, v21
                    v_max_f32 v21, 0, v21
                    v_add_f32 v21, {f2u(1e-5):#x}, v21
                    v_rsq_f32 v{V_R}, v21
                    ds_write_b32 v17, v{V_MU}
                    s_nop 0
                    ds_write_b32 v17, v{V_R} offset:128""")
                    C.lg.add("csw"); C.lg.add("csw")
                A(f"v_mov_b32 v22, v17")
                C.lwait("csw")
            top(C, c)
            pend = pend + dma_ops(C, c + 3)
            if c == 4: C.stamp()
        ex = [pend.pop(0)] if pend else []
        if s == 30:
            def rd():
                A(f"v_add_u32 v23, {CSX}, v23")
                if ch == 0:
                    A(f"""ds_read_b128 {v(CSR(0),4)}, v23
                    ds_read_b128 {v(CSR(1),4)}, v23 offset:512
                    ds_read_b32 v{V_MU}, v22
                    ds_read_b32 v{V_R}, v22 offset:128""")
                    for _ in range(4): C.lg.add("csr")
                else:
                    A(f"""v_lshrrev_b32 v18, 5, v1
                    v_lshl_add_u32 v18, v18, 4, s50
                    ds_read_b128 {v(CSR(0),4)}, v23 offset:1024""")
                    C.lg.add("csr")
                    for q in range(4):
                        A(f"ds_read_b128 {v(ACC(2)+4*q,4)}, v18 offset:{128+32*q}"); C.lg.add("csr")
            ex = [rd] + ex
        slot_ab(C, s, ch, ex)
    C.stamp()
    A.c("phase A epilogue")
    C.lwait("csr")
    if ch == 0:
        for t in range(2):
            r = CSR(t)
            A(f"v_add_f32 v{r}, v{r}, v{r+1}\nv_add_f32 v{r+2}, v{r+2}, v{r+3}")
        for t in range(2): A(f"v_add_f32 v{CSR(t)}, v{CSR(t)}, v{CSR(t)+2}")
        A(f"""s_and_b32 s51, s{S_CB}, 1
        s_cmp_eq_u32 s51, 0
        s_cselect_b32 s48, {f2u(0.25*LOG2E):#x}, 1.0
        s_cselect_b64 vcc, -1, 0
        v_mfma_f32_32x32x2_f32 {v(ACC(0),16)}, v{CSR(0)}, v{V_MU}, {v(ACC(0),16)}
        v_mfma_f32_32x32x2_f32 {v(ACC(1),16)}, v{CSR(1)}, v{V_MU}, {v(ACC(1),16)}
        v_mul_f32 v30, s48, v{V_R}""")
        A.c("store lane slot: Q natural, K with token bits 2 and 3 exchanged")
        A(f"""v_and_b32 v27, 0x33, v1
        v_bfe_u32 v29, v1, 2, 1
        v_lshl_or_b32 v27, v29, 3, v27
        v_bfe_u32 v29, v1, 3, 1
        v_lshl_or_b32 v27, v29, 2, v27
        v_cndmask_b32 v27, v27, v1, vcc
        v_lshlrev_b32 v27, 4, v27
        s_lshl_b32 s48, s51, 21
        s_lshr_b32 s49, s{S_CB}, 1
        s_lshl_b32 s49, s49, 18
        s_add_u32 s48, s48, s49
        s_lshl_b32 s49, s{S_RB}, 2
        s_add_u32 s49, s49, s{S_RT}
        s_lshl_b32 s49, s49, 10
        s_add_u32 s48, s48, s49
        s_nop 4""")
        for t in range(2):
            for hh in range(2):
                a = ACC(t) + 8 * hh; o = ACC(2) + 4 * (2 * t + hh)
                for q in range(4): A(f"v_pk_mul_f32 {v(a+2*q,2)}, {v(a+2*q,2)}, v[30:31] op_sel_hi:[1,0]")
                for q in range(4): A(f"v_cvt_pk_bf16_f32 v{o+q}, v{a+2*q}, v{a+2*q+1}")
                A(f"buffer_store_dwordx4 {v(o,4)}, v27, {WS}, s48 offen {SC}"); C.vadd("stA")
                A("s_add_u32 s48, s48, 0x10000")
    else:
        r = CSR(0)
        A(f"""v_add_f32 v{r}, v{r}, v{r+1}
        v_add_f32 v{r+2}, v{r+2}, v{r+3}
        v_and_b32 v27, 15, v1
        v_add_f32 v{r}, v{r}, v{r+2}
        v_lshlrev_b32 v27, 4, v27
        v_lshrrev_b32 v29, 5, v1
        s_nop 1
        v_mfma_f32_32x32x2_f32 {v(ACC(0),16)}, v{V_MU}, v{r}, {v(ACC(0),16)}
        v_lshl_add_u32 v27, v29, 8, v27
        v_bfe_u32 v29, v1, 4, 1
        v_lshl_add_u32 v27, v29, 16, v27
        s_lshl_b32 s48, s{S_CB}, 17
        s_lshl_b32 s49, s{S_RB}, 2
        s_add_u32 s49, s49, s{S_RT}
        s_lshl_b32 s49, s49, 10
        s_add_u32 s48, s48, s49
        s_add_u32 s48, s48, {VF}
        s_nop 9""")
        a = ACC(0)
        for jj in range(2):
            for q in range(4): A(f"v_pk_mul_f32 {v(a+8*jj+2*q,2)}, {v(a+8*jj+2*q,2)}, {v(ACC(2)+8*jj+2*q,2)}")
            for q in range(4): A(f"v_cvt_pk_bf16_f32 v{ACC(1)+4*jj+q}, v{a+8*jj+2*q}, v{a+8*jj+2*q+1}")
            A(f"buffer_store_dwordx4 {v(ACC(1)+4*jj,4)}, v27, {WS}, s48 offen offset:{512*jj} {SC}"); C.vadd("stA")
    A("s_nop 1")
    C.stamp()
    if ch == 0: C.nst = n0
    return pend

VR = lambda i, j: 128 + 8 * i + 4 * j
KR = lambda i: 192 + 4 * i
QR = lambda p: 224 + 4 * p
SR = lambda p: 32 + 16 * p
OR_ = lambda p: 64 + 16 * p
def HR(i): return 8 + 4 * i if i < 6 else (96 + 4 * (i - 6) if i < 14 else (232 + 4 * (i - 14) if i < 20 else 192 + 4 * (i - 20)))
OXW, OXB, OX0 = 2304, 18432, 126976
def OXO(t): return OXB * ((t + 1) % 2)
V_L16, V_IDX, V_W16, V_W4, V_R16, V_R4, V_DW = 2, 4, 5, 6, 7, 3, 0

def c_scalars(A):
    L = [f"""s_lshl_b32 s48, s{S_XCD}, 2
    s_lshr_b32 s49, s{S_I}, 3
    s_add_u32 s{S_HD}, s48, s49
    s_and_b32 s{S_QB}, s{S_I}, 7""",
    f"""s_lshl_b32 s48, s{S_HD}, 16
    s_lshl_b32 s49, s{S_W}, 13
    s_add_u32 s49, s48, s49
    s_add_u32 s{S_KB}, s49, {KF}
    s_add_u32 s{S_KB+1}, s49, {KF+4096}
    s_add_u32 s{S_VB}, s49, {VF}
    s_add_u32 s{S_VB+1}, s49, {VF+4096}
    s_lshl_b32 s49, s{S_QB}, 13
    s_add_u32 s50, s48, s49"""]
    for t in range(0, 8, 2):
        L.append("\n".join(f"s_sub_u32 s48, s{S_W}, {u}\ns_and_b32 s48, s48, 7\ns_lshl_b32 s48, s48, 10\ns_add_u32 s{S_QO+u}, s48, s50" for u in (t, t + 1)))
    L.append(f"""s_add_u32 s48, s{S_W}, 1
    s_and_b32 s48, s48, 7
    s_lshl_b32 s49, s{S_QB}, 3
    s_add_u32 s48, s48, s49
    s_lshl_b32 s48, s48, 5
    s_add_u32 s48, s48, s{S_HD}
    s_lshl_b32 s49, s48, 10
    s_add_u32 s{S_OST}, s49, {OF}
    s_lshl_b32 s49, s48, 7
    s_add_u32 s{S_F3}, s49, {F3}""")
    L.append(f"""s_and_b32 s48, s{S_XCD}, 3
    s_lshl_b32 s48, s48, 3
    s_and_b32 s49, s{S_I}, 7
    s_add_u32 s{S_R64}, s48, s49
    s_lshr_b32 s48, s{S_XCD}, 2
    s_lshl_b32 s48, s48, 2
    s_lshr_b32 s49, s{S_I}, 3
    s_add_u32 s{S_C64}, s48, s49""")
    L.append(f"""s_and_b32 s{S_RD}, s{S_W}, 1
    s_lshr_b32 s{S_KQ}, s{S_W}, 1
    s_lshl_b32 s48, s{S_R64}, 1
    s_add_u32 s48, s48, s{S_RD}
    s_mul_i32 s48, s48, 86
    s_mul_i32 s49, s{S_KQ}, 22
    s_add_u32 s48, s48, s49
    s_lshl_b32 s48, s48, 10
    s_add_u32 s{S_HB}, s48, {HF}""")
    return [(lambda x=x: A(x)) for x in L]

def kv_ops(C):
    A = C.A; ops = []
    def q(t):
        def f():
            A(f"buffer_load_dwordx4 {v(QR(t%2),4)}, v{V_L16}, {WS}, s{S_QO+t} offen {SC}"); C.vadd(("q", t))
        return f
    def k(i):
        def f():
            A(f"buffer_load_dwordx4 {v(KR(i),4)}, v{V_L16}, {WS}, s{S_KB+i//4} offen offset:{1024*(i%4)} {SC}"); C.vadd(("k", i))
        return f
    def vv(i):
        def f():
            A("s_mov_b32 exec_lo, 0xffff\ns_mov_b32 exec_hi, 0xffff")
            for j in range(2):
                A(f"buffer_load_dwordx4 {v(VR(i,j),4)}, v{V_R4}, {WS}, s{S_VB+i//4} offen offset:{1024*(i%4)+512*j} {SC}"); C.vadd(("v", i, j))
            A("s_mov_b64 exec, -1")
        return f
    ops.append(q(0))
    for i in range(8): ops += [k(i), vv(i)]
    ops.append(q(1))
    return ops, q

def phase_b(C, pend):
    A = C.A
    side = c_scalars(A)
    for s in range(32, 64):
        ex = []
        if s % 4 == 2 and s < 62:
            c = (s + 2) // 4
            if c == 11:
                top(C, c, ["stA"])
                A(f"s_lshl_b32 s48, s{S_CB}, 4\ns_add_u32 s48, s48, s{S_RB}\ns_lshl_b32 s48, s48, 8\ns_add_u32 s51, s48, {F1}")
                signal(A, "s51")
            else: top(C, c)
            pend = pend + dma_ops(C, c + 3)
        if s == 62:
            C.lwait("csw"); A("s_barrier")
            def rd():
                A(f"s_mul_i32 s48, s{S_CH}, 1536\ns_add_u32 s48, s48, {CSX}\nv_add_u32 v23, s48, v23")
                for t in range(3):
                    A(f"ds_read_b128 {v(CSR(t),4)}, v23 offset:{512*t}"); C.lg.add("csr")
            ex.append(rd)
        if pend: ex.append(pend.pop(0))
        if side and s >= 34: ex.append(side.pop(0))
        if s == 46:
            def ones():
                A(f"""v_and_b32 v21, 27, v1
                v_mov_b32 v22, s{S_ONES}
                v_cmp_eq_u32 vcc, 16, v21
                v_lshlrev_b32 v{V_L16}, 4, v1
                v_and_b32 v{V_R4}, 15, v1
                v_cndmask_b32 v21, 0, v22, vcc
                v_lshlrev_b32 v{V_R4}, 4, v{V_R4}
                v_lshrrev_b32 v22, 5, v1
                v_lshl_add_u32 v{V_R4}, v22, 8, v{V_R4}""")
            ex.append(ones)
        if 48 <= s < 64:
            def pre(s=s):
                for r in range(4): A(f"v_mov_b32 v{128+4*(s-48)+r}, v21")
            ex.append(pre)
        if s == 56:
            def pa():
                A(f"""s_lshr_b32 s48, s{S_HD}, 2
                s_lshl_b32 s48, s48, 5
                v_and_b32 v5, 1, v1
                v_lshrrev_b32 v4, 1, v1
                s_lshl_b32 s49, s{S_W}, 1
                v_add_u32 v4, s49, v4
                v_lshl_add_u32 v4, v5, 4, v4
                s_lshl_b32 s49, s{S_QB}, 1
                v_add_u32 v5, s49, v5
                v_cmp_gt_u32 vcc, 4, v1
                s_add_u32 s48, s48, {F1 >> 8}
                s_nop 0
                v_cndmask_b32 v4, v5, v4, vcc
                v_add_lshl_u32 v4, v4, s48, 8""")
            ex.append(pa)
        if s == 59: ex.append(lambda: poll_issue(C, 5, 4, 0x3f))
        slot_ab(C, s, 0, ex)
        if s == 60:
            A(f"s_mul_i32 s50, s{S_CH}, 1536\ns_nop 5")
            for t in range(3): A(f"v_permlane16_swap_b32 v{CSR(t)}, v{CSR(t)+1}")
            A(f"""v_and_b32 v23, 31, v1
            v_lshlrev_b32 v23, 4, v23
            s_lshl_b32 s48, s{S_RT}, 2
            s_add_u32 s48, s48, s50
            s_add_u32 s48, s48, {CSX}
            v_add_u32 v18, s48, v23""")
            for t in range(3):
                A(f"ds_write_b32 v18, v{CSR(t)} offset:{512*t}"); C.lg.add("csw")
    assert not pend and not side
    C.stamp()
    A.c("phase B epilogue, attention operand loads interleaved")
    C.lwait("csr")
    for t in range(3):
        r = CSR(t); A(f"v_add_f32 v{r}, v{r}, v{r+1}\nv_add_f32 v{r+2}, v{r+2}, v{r+3}")
    for t in range(3): A(f"v_add_f32 v{CSR(t)}, v{CSR(t)}, v{CSR(t)+2}")
    A(f"""v_mul_f32 v24, {f2u(-LOG2E):#x}, v{V_R}
    v_mul_f32 v26, v{V_R}, v{V_R}""")
    for t in range(3):
        A(f"v_mfma_f32_32x32x2_f32 {v(ACC(t),16)}, v{CSR(t)}, v{V_MU}, {v(ACC(t),16)}")
    A(f"""v_rcp_f32 v26, v26
    s_lshl_b32 s52, s{S_RB}, 2
    s_add_u32 s52, s52, s{S_RT}
    s_mul_i32 s52, s52, 86
    s_mul_i32 s53, s{S_CB}, 6
    s_mul_i32 s50, s{S_CH}, 3
    s_add_u32 s53, s53, s50
    s_add_u32 s52, s52, s53
    s_lshl_b32 s52, s52, 10
    s_add_u32 s52, s52, {HF}""")
    poll_check(C, 5, 4, 0x3f)
    ops, qop = kv_ops(C)
    for _ in range(3): ops.pop(0)()
    def drip():
        if ops: ops.pop(0)()
    for t in range(3):
        g = ACC(t); u = g + 8; T = 32 + 8 * (t % 2); o = 48 + 4 * t
        for q in range(4): A(f"v_pk_mul_f32 {v(T+2*q,2)}, {v(g+2*q,2)}, v[24:25] op_sel_hi:[1,0]")
        for q in range(8):
            A(f"v_exp_f32 v{T+q}, v{T+q}")
            if q % 4 == 3: drip()
        for q in range(4): A(f"v_pk_mul_f32 {v(g+2*q,2)}, {v(g+2*q,2)}, {v(u+2*q,2)}")
        for q in range(4): A(f"v_pk_fma_f32 {v(T+2*q,2)}, {v(T+2*q,2)}, v[26:27], v[26:27] op_sel_hi:[1,0,0]")
        drip()
        for q in range(8):
            A(f"v_rcp_f32 v{T+q}, v{T+q}")
            if q % 4 == 3: drip()
        A("s_cmp_lt_u32 s53, 86\ns_cselect_b32 s50, s52, 0x80000000")
        for q in range(4): A(f"v_pk_mul_f32 {v(g+2*q,2)}, {v(g+2*q,2)}, {v(T+2*q,2)}")
        for q in range(4): A(f"v_cvt_pk_bf16_f32 v{o+q}, v{g+2*q}, v{g+2*q+1}")
        A(f"buffer_store_dwordx4 {v(o,4)}, v{V_L16}, {WS}, s50 offen {SC}"); C.vadd("stB")
        A("s_add_u32 s52, s52, 1024\ns_add_u32 s53, s53, 1")
    while ops: drip()
    return qop

USLOT = lambda u: (u % 19) * 8192

def d_unit(C, u, vwo=None):
    A = C.A
    if u < 22:
        A(f"s_add_u32 m0, s{S_W1024}, {USLOT(u)}\ns_mov_b32 s49, {16384*u}")
        A(f"buffer_load_dwordx4 v{V_DW}, s[{sWD}:{sWD+3}], s49 offen lds")
    else:
        A(f"s_add_u32 m0, s{S_W1024}, {USLOT(u)}\ns_mov_b32 s49, {65536*(u-22)}")
        A(f"buffer_load_dwordx4 v{vwo}, s[{sWO}:{sWO+3}], s49 offen lds")
    C.vadd(("u", u))

def d_hload(C, i):
    A = C.A
    if i < 20:
        if i % 4 == 0: A(f"s_add_u32 s{S_HS}, s{S_HB}, {1024*i}")
        A(f"buffer_load_dwordx4 {v(HR(i),4)}, v{V_L16}, {WS}, s{S_HS} offen offset:{1024*(i%4)} {SC}")
    else:
        A(f"s_cmp_eq_u32 s{S_KQ}, 3\ns_cselect_b32 s48, 19, {i}\ns_lshl_b32 s48, s48, 10\ns_add_u32 s48, s48, s{S_HB}")
        A(f"buffer_load_dwordx4 {v(HR(i),4)}, v{V_L16}, {WS}, s48 offen {SC}")
    C.vadd(("h", i))

def phase_c(C, qop):
    A = C.A
    A(f"""v_mov_b32 v{V_IDX}, 0xdddddddd
    s_mul_i32 s48, s{S_W}, {OXW}
    s_add_u32 s48, s48, {OX0}
    v_add_u32 v{V_W16}, s48, v{V_L16}
    v_lshl_add_u32 v{V_W4}, v1, 2, s48
    s_sub_u32 s48, s{S_W}, 2
    s_and_b32 s48, s48, 7
    s_mul_i32 s48, s48, {OXW}
    s_add_u32 s48, s48, {OX0}
    v_add_u32 v{V_R16}, s48, v{V_L16}
    v_lshl_add_u32 v{V_R4}, v1, 2, s48""")
    def qk(n):
        t, i = divmod(n, 8)
        if t == 0: C.vwait([("k", i), ("q", 0)])
        elif i == 0: C.vwait(("q", t))
        A(f"v_mfma_f32_32x32x16_bf16 {v(SR(n%2),16)}, {v(KR(i),4)}, {v(QR(t%2),4)}, 0")
    def sm(n, j):
        t, i = divmod(n, 8)
        if t == 0: C.vwait(("v", i, j))
        if i == 0 and j == 0 and t >= 2: C.lwait(("ox", t))
        A(f"v_smfmac_f32_32x32x32_bf16 {v(OR_(t%2),16)}, {v(VR(i,j),4)}, {v(SR(n%2)+8*j,8)}, v{V_IDX}")
    def oxw(t, k):
        o = OR_((t - 1) % 2); off = OXO(t)
        if k < 2: A(f"ds_write_b128 v{V_W16}, {v(o+4*k,4)} offset:{off+1024*k}")
        else: A(f"ds_write_b32 v{V_W4}, v{o+8} offset:{off+2048}")
        C.lg.add("oxw")
    def oxr(t, k):
        o = OR_((t + 1) % 2); off = OXO(t)
        if k < 2: A(f"ds_read_b128 {v(o+4*k,4)}, v{V_R16} offset:{off+1024*k}")
        else: A(f"ds_read_b32 v{o+8}, v{V_R4} offset:{off+2048}")
        C.lg.add(("ox", t + 1))
    ext = {}
    def at(t, i, f): ext.setdefault((t, i), []).append(f)
    def dw_addr():
        A(f"""v_lshrrev_b32 v8, 3, v1
        v_bfe_u32 v9, v1, 4, 1
        v_lshlrev_b32 v9, 2, v9
        v_and_b32 v10, 7, v1
        v_xor_b32 v9, v9, v10
        v_lshlrev_b32 v9, 4, v9
        v_lshl_add_u32 v9, v8, 10, v9
        s_mul_i32 s48, s{S_KQ}, 352
        s_lshl_b32 s49, s{S_RD}, 3
        s_add_u32 s48, s48, s49
        s_lshl_b32 s48, s48, 10
        s_lshl_b32 s49, s{S_C64}, 7
        s_add_u32 s48, s48, s49
        v_add_u32 v{V_DW}, s48, v9
        s_mul_i32 s48, s{S_KQ}, 11
        s_mul_i32 s48, s48, 171
        s_lshr_b32 s48, s48, 9
        s_lshr_b32 s49, s{S_R64}, 1
        s_lshl_b32 s49, s49, 4
        s_add_u32 s48, s48, s49
        s_add_u32 s48, s48, {F2 >> 8}
        v_add_lshl_u32 v8, v1, s48, 8""")
    at(0, 6, dw_addr)
    pos = [(t, i) for t in range(1, 8) for i in range(8) if (t, i) >= (1, 5)]
    for u in range(15): at(*pos[u], lambda u=u: d_unit(C, u))
    at(2, 6, lambda: poll_issue(C, 9, 8, 0x1f))
    at(3, 4, lambda: poll_check(C, 9, 8, 0x1f))
    hp = [p for p in pos if p >= (3, 5)]
    for i in range(20): at(*hp[i], lambda i=i: d_hload(C, i))
    def r1():
        A(f"""s_sub_u32 s48, s{S_W}, 1
        s_and_b32 s48, s48, 7
        s_mul_i32 s48, s48, {OXW}
        s_add_u32 s48, s48, {OX0}
        v_add_u32 v{V_R16}, s48, v{V_L16}
        v_lshl_add_u32 v{V_R4}, v1, 2, s48""")
    at(7, 2, r1)
    qk(0)
    for p in range(2):
        for r in range(9): A(f"v_mov_b32 v{OR_(p)+r}, 0")
    C.stamp()
    for n in range(64):
        t, i = divmod(n, 8)
        sb = SR(n % 2)
        e = lambda k: A(f"v_exp_f32 v{sb+k}, v{sb+k}")
        e(0); e(1)
        if n > 0: sm(n - 1, 1)
        e(2); e(3); e(4)
        if n < 63: qk(n + 1)
        e(5); e(6)
        if t >= 1 and 1 <= i <= 3: oxw(t, i - 1)
        if t >= 1 and 5 <= i <= 7: oxr(t, i - 5)
        if i == 0 and 1 <= t <= 6: qop(t + 1)()
        e(7); e(8); e(9)
        sm(n, 0)
        e(10); e(11)
        if t >= 1 and i == 4:
            C.lwait("oxw")
            if t == 1: C.vwait("stB")
            A("s_barrier")
            if t == 1:
                A(f"s_lshl_b32 s48, s{S_RB}, 4\ns_add_u32 s48, s48, s{S_CB}\ns_lshl_b32 s48, s48, 8\ns_add_u32 s51, s48, {F2}")
                signal(A, "s51")
        for f in ext.get((t, i), []): f()
        if i == 3 and t in (1, 4): C.stamp()
        for k in range(12, 16): e(k)
    A("s_nop 1")
    sm(63, 1)
    C.lwait0()
    C.stamp()
    A(f"s_mov_b32 s50, {f2u(2.0**-64):#x}\ns_mov_b32 s51, {f2u(2.0**64):#x}\ns_nop 8")
    o1, o0 = OR_(1), OR_(0)
    for r in (8, 0, 1, 2, 3, 4, 5, 6, 7): A(f"v_add_f32 v{o1+r}, v{o1+r}, v{o0+r}")
    lslow, lfin = A.label("slow"), A.label("fin")
    A(f"""v_cmp_lt_f32 s[52:53], s50, v{o1+8}
    v_cmp_gt_f32 vcc, s51, v{o1+8}
    s_nop 3
    s_and_b64 vcc, vcc, s[52:53]
    s_cmp_eq_u64 vcc, -1
    s_cbranch_scc0 {lslow}
    {lfin}:
    v_rcp_f32 v{o1+8}, v{o1+8}
    s_nop 0""")
    for q in range(4): A(f"v_pk_mul_f32 {v(o1+2*q,2)}, {v(o1+2*q,2)}, {v(o1+8,2)} op_sel_hi:[1,0]")
    for q in range(4): A(f"v_cvt_pk_bf16_f32 v{o0+q}, v{o1+2*q}, v{o1+2*q+1}")
    A(f"buffer_store_dwordx4 {v(o0,4)}, v{V_L16}, {WS}, s{S_OST} offen {SC}"); C.vadd("stO")
    return lslow, lfin

def phase_c_slow(A, lslow, lfin):
    o1, o0, S, q = OR_(1), OR_(0), SR(0), QR(1)
    l1, l2 = A.label("p1"), A.label("p2")
    A(f"""{lslow}:
    s_waitcnt vmcnt(0)
    s_lshl_b32 s48, s{S_HD}, 16
    s_add_u32 s54, s48, {KF}
    s_add_u32 s55, s48, {VF}
    s_mov_b32 s50, 0
    v_and_b32 v{V_R4}, 15, v1
    v_lshlrev_b32 v{V_R4}, 4, v{V_R4}
    v_lshrrev_b32 v7, 5, v1
    v_lshl_add_u32 v{V_R4}, v7, 8, v{V_R4}
    v_mov_b32 v7, 0xff7fffff
    {l1}:
    s_add_u32 s48, s54, s50
    buffer_load_dwordx4 {v(KR(0),4)}, v{V_L16}, {WS}, s48 offen {SC}
    s_waitcnt vmcnt(0)
    v_mfma_f32_32x32x16_bf16 {v(S,16)}, {v(KR(0),4)}, {v(q,4)}, 0
    s_nop 15""")
    for r in range(8): A(f"v_max3_f32 v7, v7, v{S+2*r}, v{S+2*r+1}")
    A(f"""s_add_u32 s50, s50, 1024
    s_cmp_lt_u32 s50, 0x10000
    s_cbranch_scc1 {l1}
    v_mov_b32 v{o0}, v7
    s_nop 1
    v_permlane32_swap_b32 v7, v{o0}
    s_nop 1
    v_max_f32 v7, v7, v{o0}""")
    for r in range(16): A(f"v_sub_f32 v{o0+r}, 0, v7\nv_mov_b32 v{o1+r}, 0")
    A(f"""s_mov_b32 s50, 0
    {l2}:
    s_add_u32 s48, s54, s50
    s_add_u32 s49, s55, s50
    buffer_load_dwordx4 {v(KR(0),4)}, v{V_L16}, {WS}, s48 offen {SC}
    s_mov_b32 exec_lo, 0xffff
    s_mov_b32 exec_hi, 0xffff
    buffer_load_dwordx4 {v(VR(0,0),4)}, v{V_R4}, {WS}, s49 offen {SC}
    buffer_load_dwordx4 {v(VR(0,1),4)}, v{V_R4}, {WS}, s49 offen offset:512 {SC}
    s_mov_b64 exec, -1
    s_waitcnt vmcnt(0)
    v_mfma_f32_32x32x16_bf16 {v(S,16)}, {v(KR(0),4)}, {v(q,4)}, {v(o0,16)}
    s_nop 15""")
    for r in range(16): A(f"v_exp_f32 v{S+r}, v{S+r}")
    A(f"""s_nop 1
    v_smfmac_f32_32x32x32_bf16 {v(o1,16)}, {v(VR(0,0),4)}, {v(S,8)}, v{V_IDX}
    v_smfmac_f32_32x32x32_bf16 {v(o1,16)}, {v(VR(0,1),4)}, {v(S+8,8)}, v{V_IDX}
    s_nop 15
    s_add_u32 s50, s50, 1024
    s_cmp_lt_u32 s50, 0x10000
    s_cbranch_scc1 {l2}
    s_branch {lfin}""")

WB = lambda s: 32 + 8 * (s % 3)
AF = lambda ct: 64 + 16 * ct
WOR = lambda q: 128 + 4 * q
OB = lambda p: 200 + 4 * p
AS = 216
V_TR, V_TW, V_DWO, V_XO, V_FIN, V_T, V_PA, V_PF, V_X = 56, 58, 5, 6, 7, 3, 59, 60, 224
FXS = 17408
OREG = 11 * 8192

def phase_d(C):
    A = C.A
    for i in (20, 21): d_hload(C, i)
    A(f"""s_mul_i32 s48, s{S_KQ}, 352
    s_lshl_b32 s49, s{S_RD}, 3
    s_add_u32 s48, s48, s49
    s_lshl_b32 s49, s{S_W}, 3
    s_sub_u32 s48, s49, s48
    s_lshl_b32 s48, s48, 10
    v_add_u32 v{V_DWO}, s48, v{V_DW}
    v_lshrrev_b32 v61, 3, v1
    v_add_u32 v61, s49, v61
    v_and_b32 v62, 7, v1
    s_lshl_b32 s48, s{S_R64}, 16
    s_lshl_b32 s49, s{S_C64}, 7
    s_add_u32 s48, s48, s49
    v_lshlrev_b32 v{V_XO}, 10, v61
    v_lshlrev_b32 v63, 4, v62
    v_add3_u32 v{V_XO}, v{V_XO}, v63, s48
    buffer_load_dwordx4 {v(V_X,4)}, v{V_XO}, s[{sX}:{sX+3}], 0 offen""")
    C.vadd("x")
    A(f"""s_movk_i32 s48, 272
    v_mul_u32_u24 v{V_FIN}, s48, v61
    v_lshl_add_u32 v{V_FIN}, v62, 5, v{V_FIN}
    v_lshrrev_b32 v61, 5, v1
    v_bfe_u32 v62, v1, 2, 2
    v_lshl_add_u32 v62, v61, 2, v62
    v_lshlrev_b32 v{V_TW}, 7, v62
    v_bfe_u32 v62, v1, 3, 1
    v_lshl_add_u32 v{V_TW}, v62, 6, v{V_TW}
    v_bfe_u32 v62, v1, 4, 1
    v_lshl_add_u32 v{V_TW}, v62, 5, v{V_TW}
    v_and_b32 v62, 3, v1
    v_lshl_add_u32 v{V_TW}, v62, 3, v{V_TW}
    s_lshl_b32 s49, s{S_KQ}, 11
    v_add_u32 v{V_TR}, s49, v{V_TW}
    v_xor_b32 v{V_TR+1}, 64, v{V_TR}
    v_and_b32 v62, 31, v1
    s_lshl_b32 s49, s{S_RD}, 5
    v_add_u32 v62, s49, v62
    v_mul_u32_u24 v{V_T}, s48, v62
    v_lshl_add_u32 v{V_T}, v61, 4, v{V_T}""")
    C.vwait([("u", u) for u in range(15)] + [("h", i) for i in range(20)])
    A("s_barrier")
    C.stamp()
    win = [0]
    def rd(i, ct):
        b = WB(i) + 4 * ct; w = USLOT(i) // 65536
        if ct == 0 and w != win[0]:
            d = (w - win[0]) * 65536
            A(f"v_add_u32 v{V_TR}, {d & 0xffffffff:#x}, v{V_TR}\nv_add_u32 v{V_TR+1}, {d & 0xffffffff:#x}, v{V_TR+1}")
            win[0] = w
        for u in range(2):
            A(f"ds_read_b64_tr_b16 {v(b+2*u,2)}, v{V_TR+ct} offset:{USLOT(i)-65536*w+1024*u}"); C.lg.add(("w", i))
    for i in range(2):
        for ct in range(2): rd(i, ct)
    pend = [lambda u=u: d_unit(C, u, V_DWO) for u in range(15, 19)]
    o_ops = []
    for i in range(22):
        if i == 4:
            A("s_barrier"); pend += [lambda u=u: d_unit(C, u, V_DWO) for u in range(19, 23)]
        if i == 12:
            C.vwait([("u", u) for u in range(15, 22)] + [("h", 20), ("h", 21)])
            A("s_barrier"); pend += [lambda u=u: d_unit(C, u, V_DWO) for u in range(23, 30)]
        if i == int(OPT.get("f3", 6)):
            C.vwait("stO")
            A(f"""s_mov_b64 exec, 1
            v_mov_b32 v61, s{S_NON}
            buffer_store_dword v61, off, {WS}, s{S_F3} {SC}
            s_mov_b64 exec, -1""")
            C.vadd("flag")
        if i == 10:
            A(f"""s_lshl_b32 s48, s{S_R64}, 1
            s_add_u32 s48, s48, s{S_RD}
            s_lshl_b32 s48, s48, 5
            s_bfe_u32 s51, s{S_W}, 0x10001
            s_lshl_b32 s50, s51, 4
            s_lshr_b32 s47, s{S_W}, 2
            s_add_u32 s50, s50, s47
            s_add_u32 s52, s48, s50
            v_lshl_add_u32 v{V_PA}, v1, 1, s52
            v_lshlrev_b32 v{V_PA}, 7, v{V_PA}
            v_add_u32 v{V_PA}, {F3:#x}, v{V_PA}
            s_lshl_b32 s52, s52, 10
            s_add_u32 s52, s52, {OF}
            s_lshl_b32 s48, s{S_RD}, 5
            s_add_u32 s53, s48, s50
            s_lshl_b32 s53, s53, 10
            s_add_u32 s53, s53, {OREG}""")
        if i == 19:
            poll_check(C, V_PF, V_PA, 0xff)
            A("s_barrier")
            def oop(q):
                A(f"s_add_u32 m0, s53, {2048*q}\ns_add_u32 s48, s52, {2048*q}")
                A(f"buffer_load_dwordx4 v{V_L16}, {WS}, s48 offen {SC} lds"); C.vadd(("o", q))
            pend += [lambda q=q: oop(q) for q in range(8)]
        C.lwait(("w", i))
        for ct in range(2):
            A(f"v_mfma_f32_32x32x16_bf16 {v(AF(ct),16)}, {v(WB(i)+4*ct,4)}, {v(HR(i),4)}, {'0' if i == 0 else v(AF(ct),16)}")
            if i + 2 < 22: rd(i + 2, ct)
            if pend: pend.pop(0)()
        if i == 16: poll_issue(C, V_PF, V_PA, 0xff)
    C.stamp()
    while pend: pend.pop(0)()
    A.c("wo fragments into registers; wave = (tile, k half)")
    C.vwait([("u", u) for u in range(22, 30)])
    A(f"""s_barrier
    s_lshl_b32 s48, s51, 6
    v_xor_b32 v{V_TW}, s48, v{V_TW}
    s_mul_i32 s48, s47, {4*8192}
    s_add_u32 s48, s48, {USLOT(22)}
    v_add_u32 v{V_TW}, s48, v{V_TW}""")
    for q in range(16):
        for u in range(2): A(f"ds_read_b64_tr_b16 {v(WOR(q)+2*u,2)}, v{V_TW} offset:{2048*q+1024*u}")
        if q % 4 == 3: A("s_waitcnt lgkmcnt(4)")
    A(f"s_mul_i32 s48, s{S_KQ}, {FXS}\nv_add_u32 v61, s48, v{V_T}")
    C.lwait0()
    A("s_barrier")
    for ct in range(2):
        for j in range(4): A(f"ds_write_b128 v61, {v(AF(ct)+4*j,4)} offset:{128*ct+32*j}")
    C.lwait0()
    A("s_barrier")
    F = 64
    for kq in range(4):
        for hh in range(2): A(f"ds_read_b128 {v(F+8*kq+4*hh,4)}, v{V_FIN} offset:{FXS*kq+16*hh}")
    C.lwait0()
    for q in range(4):
        A(f"v_pk_add_f32 {v(F+2*q,2)}, {v(F+2*q,2)}, {v(F+8+2*q,2)}\nv_pk_add_f32 {v(F+16+2*q,2)}, {v(F+16+2*q,2)}, {v(F+24+2*q,2)}")
    for q in range(4): A(f"v_pk_add_f32 {v(F+2*q,2)}, {v(F+2*q,2)}, {v(F+16+2*q,2)}")
    for q in range(8): A(f"v_mul_f32 v{F+8+q}, {f2u(-LOG2E):#x}, v{F+q}")
    for q in range(8): A(f"v_exp_f32 v{F+8+q}, v{F+8+q}")
    for q in range(8): A(f"v_add_f32 v{F+8+q}, 1.0, v{F+8+q}")
    for q in range(8): A(f"v_rcp_f32 v{F+8+q}, v{F+8+q}")
    A(f"""s_lshl_b32 s48, s{S_RD}, 1
    s_add_u32 s48, s48, s47
    s_lshl_b32 s48, s48, 14
    s_add_u32 s48, s48, {OREG}
    v_add_u32 v61, s48, v{V_L16}""")
    for q in range(8): A(f"v_mul_f32 v{F+q}, v{F+q}, v{F+8+q}")
    for q in range(4):
        A(f"v_lshlrev_b32 v{F+8+2*q}, 16, v{V_X+q}\nv_and_b32 v{F+9+2*q}, 0xffff0000, v{V_X+q}")
    C.stamp()
    C.vwait([("o", q) for q in range(8)])
    A("s_barrier")
    for q in range(4):
        A(f"ds_read_b128 {v(OB(q),4)}, v61 offset:{1024*q}"); C.lg.add(("o", q))
    l = A.label("ep")
    A(f"""s_add_u32 s48, s2, s{S_W}
    s_cmp_lg_u32 s48, 0
    s_cbranch_scc1 {l}
    s_mov_b64 exec, 1
    v_mov_b32 v62, s{S_NON}
    s_mov_b32 s48, {EPO}
    buffer_store_dword v62, off, {WS}, s48 {SC}
    s_mov_b64 exec, -1
    {l}:""")
    for q in range(16):
        C.lwait(("o", q))
        A(f"v_mfma_f32_32x32x16_bf16 {v(AS,16)}, {v(WOR(q),4)}, {v(OB(q%4),4)}, {'0' if q == 0 else v(AS,16)}")
        if q + 4 < 16:
            A(f"ds_read_b128 {v(OB(q%4),4)}, v61 offset:{1024*(q+4)}"); C.lg.add(("o", q + 4))
    A(f"""s_mul_i32 s48, s47, {FXS}
    s_lshl_b32 s49, s51, 7
    s_add_u32 s48, s48, s49
    v_add_u32 v61, s48, v{V_T}
    s_nop 8""")
    for j in range(4): A(f"ds_write_b128 v61, {v(AS+4*j,4)} offset:{32*j}")
    C.lwait0()
    A("s_barrier")
    G = 80
    for kh in range(2):
        for hh in range(2): A(f"ds_read_b128 {v(G+8*kh+4*hh,4)}, v{V_FIN} offset:{FXS*kh+16*hh}")
    C.lwait0()
    for q in range(4): A(f"v_pk_add_f32 {v(G+2*q,2)}, {v(G+2*q,2)}, {v(G+8+2*q,2)}")
    for q in range(4): A(f"v_pk_fma_f32 {v(G+2*q,2)}, {v(G+2*q,2)}, {v(F+2*q,2)}, {v(F+8+2*q,2)}")
    for q in range(4): A(f"v_cvt_pk_bf16_f32 v{G+8+q}, v{G+2*q}, v{G+2*q+1}")
    A(f"buffer_store_dwordx4 {v(G+8,4)}, v{V_XO}, s[{sOUT}:{sOUT+3}], 0 offen")

def build():
    NAME = "recurrent_scan__mha_block__swiglu_ffn__prompt"
    K = NAME + "_kernel"
    hdr = open("cdna_kernels/%s.s.ref" % NAME).read().split("; Override")[0]
    out = hdr + "; @launch grid=(256,1,1) block=(512,1,1) lds=163840\n"
    out += '.amdgcn_target "amdgcn-amd-amdhsa--gfx950"\n.text\n'
    A = Asm(); C = Ctx(A)
    A(f".globl {K}\n.p2align 8\n.type {K},@function\n{K}:")
    A("s_cmp_ge_u32 s2, 256\ns_cbranch_scc1 L_end")
    A(f"s_load_dwordx16 s[{PTR}:{PTR+15}], s[0:1], 0\ns_load_dwordx4 s[{PTR+16}:{PTR+19}], s[0:1], 64")
    setup0(A)
    A("s_waitcnt lgkmcnt(0)")
    srd(A, sX, PTR + 0, 2048 * 512 * 2)
    srd(A, sWQ, PTR + 2, 512 * 1536 * 2)
    C.stamp(True); C.stamp()
    for f in dma_ops(C, 0): f()
    A(f"s_add_u32 s4, s{PTR+18}, {EPO}\ns_addc_u32 s5, s{PTR+19}, 0\ns_load_dword s{S_NON}, s[4:5], 0")
    for f in dma_ops(C, 1): f()
    setup1(A)
    for f in dma_ops(C, 2): f()
    setup2(A)
    if os.environ.get("PROF") == "rt": A("s_mov_b32 s54, s80\ns_mov_b32 s55, s81")
    A(f"s_waitcnt lgkmcnt(0)\ns_mul_i32 s{S_NON}, s{S_NON}, 0x9e3779b1\ns_add_u32 s{S_NON}, s{S_NON}, 0x7f4a7c15")
    l1, lm = A.label("a1"), A.label("am")
    A(f"s_cmp_lg_u32 s{S_CH}, 0\ns_cbranch_scc1 {l1}")
    base = C.vm[0]
    C.vm = [base.copy()]
    path_a(C, 0)
    vm0, lg0 = C.vm[0], C.lg
    A(f"s_branch {lm}\n{l1}:")
    C.vm = [base.copy()]; C.lg = Cnt(15)
    pend = path_a(C, 1)
    assert lg0.q == C.lg.q, (lg0.q, C.lg.q)
    A(f"{lm}:")
    C.vm = [vm0, C.vm[0]]
    qop = phase_b(C, pend)
    if os.environ.get("PROF") == "rt": A("s_mov_b32 s90, s54\ns_mov_b32 s91, s55")
    ls, lf = phase_c(C, qop)
    phase_d(C)
    if C.prof:
        C.stamp(); C.stamp(True)
        if os.environ.get("PROF") == "rt":
            A("s_mov_b32 s44, s90\ns_and_b32 s45, s91, 0xffff\ns_movk_i32 s46, 256\ns_mov_b32 s47, 0x00020000")
        C.dump()
    A("s_endpgm")
    phase_c_slow(A, ls, lf)
    A("L_end:\ns_endpgm")
    out += A.text() + '.section .rodata,"a"\n.p2align 6\n' + kdesc(K)
    dst = sys.argv[1] if len(sys.argv) > 1 else "cdna_kernels/%s.s" % NAME
    open(dst, "w").write(out)
    print("wrote", dst, len(out), "bytes; stamps", C.nst)

if __name__ == "__main__":
    build()
```
